```python
import torch

def _softmax(x, axis=-1):
    return torch.softmax(x, dim=axis)
def _gelu(x):
    return torch.nn.functional.gelu(x, approximate="tanh")
def _silu(x):
    return torch.nn.functional.silu(x)
def _sigmoid(x):
    return torch.sigmoid(x)
def _layernorm(x, axis=-1, eps=1e-5):
    m = x.mean(dim=axis, keepdim=True)
    v = x.var(dim=axis, keepdim=True, unbiased=False)
    return (x - m) / torch.sqrt(v + eps)
def _scatter_add(tgt, idx, src, axis=0):
    return tgt.clone().index_add_(axis, idx, src)
def _segment_sum(src, seg, n):
    out = torch.zeros((n,) + src.shape[1:], dtype=src.dtype)
    return out.index_add_(0, seg, src)
def _pad(x, pw):
    flat = tuple(v for pair in reversed(pw) for v in pair)
    return torch.nn.functional.pad(x, flat)

kernel_name = 'standalone__mpnn_edge_mlp__graph'

def setup_inputs():

    _w = (lambda a: (lambda t: t.to(torch.bfloat16) if t.is_floating_point() else t)(torch.as_tensor(a)))
    N, deg, D, De = 50000, 16, 64, max(0, 1)
    E = N * deg
    return {
        "x": _w((lambda *s: torch.randn(*s, dtype=torch.bfloat16) * 0.05)(N, D)),
        "e_attr": _w((lambda *s: torch.randn(*s, dtype=torch.bfloat16) * 0.8)(E, De)),
        "src": _w((lambda lo, hi, *s: torch.randint(lo, hi, s))(0, N, E).to(torch.int64)),
        "dst": _w((lambda lo, hi, *s: torch.randint(lo, hi, s))(0, N, E).to(torch.int64)),
        "w_msg": _w((lambda *s: torch.randn(*s, dtype=torch.bfloat16) * 0.8)(2 * D + De, D)),
        "w_upd": _w((lambda *s: torch.randn(*s, dtype=torch.bfloat16) * 0.05)(2 * D, D)),
    }

def reference(x, e_attr, src, dst, w_msg, w_upd):
    N, D = x.shape
    m_in = torch.concatenate([x[src], x[dst], e_attr], axis=-1)
    msg = _silu(m_in @ w_msg)
    agg = _segment_sum(msg, dst, N)
    return _silu(torch.concatenate([x, agg], axis=-1) @ w_upd)
```

```python
class Asm:
    def __init__(self):
        self.lines = []
    def __call__(self, s=''):
        for l in s.strip('\n').split('\n'):
            l = l.strip()
            if not l:
                continue
            if l.endswith(':') and ' ' not in l:
                self.lines.append(l)
            else:
                self.lines.append('    ' + l)
    def raw(self, s):
        self.lines.append(s)
    def text(self):
        return '\n'.join(self.lines) + '\n'

def vr(a, n=1):
    return f'v{a}' if n == 1 else f'v[{a}:{a+n-1}]'
def sr(a, n=1):
    return f's{a}' if n == 1 else f's[{a}:{a+n-1}]'

STAMPS = False
WS_STAMP = 0xF00000
CYC = False
def stamp(A, k):
    if STAMPS:
        A(f's_mem{"time" if CYC else "realtime"} s[{64+2*k}:{65+2*k}]')
def flush_stamps(A, n, wsbase, kernel_off, tmpv=120, tmps=58):
    if not STAMPS: return
    A(f'''
    s_waitcnt lgkmcnt(0)
    s_mov_b64 exec, 1
    v_lshrrev_b32 v{tmpv}, 6, v0
    s_lshl_b32 s{tmps}, s2, 4
    v_add_u32 v{tmpv}, s{tmps}, v{tmpv}
    v_lshlrev_b32 v{tmpv}, 6, v{tmpv}
    v_add_u32 v{tmpv}, {WS_STAMP + kernel_off}, v{tmpv}
    ''')
    for k in range(n):
        A(f'v_mov_b32 v{tmpv+1}, s{64+2*k}')
        A(f'global_store_dword v{tmpv}, v{tmpv+1}, s[{wsbase}:{wsbase+1}] offset:{4*k}')
        A('s_nop 1')
```

```python
N = 50000
E = 800000
NB = 196
CHUNK = 3136
K1_GRID = 513
MAGIC196 = 85599
NLOG2E = 0xbfb8aa3b
NLN2 = 0xbf317218
WS_REC = 0
WS_SEG = 0x640000
WS_PT = 0x700000
WS_FRAG = 0xE00000
K1_CNT = 0
K1_OFF = 1024
K1_STAGE = 2048
K1_LDS = 2048 + CHUNK*8
ROWB = 272
K2_Q = 0
K2_AGG = 200*ROWB
K2_SRC = 2*200*ROWB
K2_E = K2_SRC + 16384
K2_CNT = K2_E + 16384
K2_OFF = K2_CNT + 1024
K2_ORD = K2_OFF + 1024
K2_BINS = K2_ORD + 1024
K2_MISC = K2_BINS + 256
K2_LDS = K2_MISC + 64
NGROUPS = 25
```

```python
from asm import *
import asm
from consts import *

def srd(A, d, base, nbytes_or_records, stride=0):
    A(f's_mov_b32 s{d}, s{base}')
    if stride:
        A(f's_and_b32 s{d+1}, s{base+1}, 0xffff')
        A(f's_or_b32 s{d+1}, s{d+1}, {stride<<16}')
    else:
        A(f's_and_b32 s{d+1}, s{base+1}, 0xffff')
    A(f's_mov_b32 s{d+2}, {nbytes_or_records}')
    A(f's_mov_b32 s{d+3}, 0x20000')

def scan64(A, v, tmp=None):
    for sh in (1, 2, 4, 8):
        A('s_nop 1')
        A(f'v_add_u32_dpp v{v}, v{v}, v{v} row_shr:{sh} row_mask:0xf bank_mask:0xf bound_ctrl:1')
    A('s_nop 1')
    A(f'v_add_u32_dpp v{v}, v{v}, v{v} row_bcast:15 row_mask:0xa bank_mask:0xf')
    A('s_nop 1')
    A(f'v_add_u32_dpp v{v}, v{v}, v{v} row_bcast:31 row_mask:0xc bank_mask:0xf')

def gen_k1(A):
    A('''
.globl k1_kernel
.p2align 8
.type k1_kernel,@function
k1_kernel:
''')
    stamp(A,0)
    A('''
    s_cmp_ge_u32 s2, %d
    s_cbranch_scc1 K1_END
    s_load_dwordx4 s[4:7], s[0:1], 0      ; x, e_attr
    s_load_dwordx4 s[8:11], s[0:1], 16    ; src, dst
    s_load_dwordx4 s[12:15], s[0:1], 32   ; w_msg, w_upd
    s_load_dwordx2 s[16:17], s[0:1], 64   ; ws
    s_cmp_ge_u32 s2, 256
    s_cbranch_scc1 K1_NOTBIN
''' % K1_GRID)
    A(f'''
    v_lshlrev_b32 v1, 3, v0
    s_mul_i32 s3, s2, {CHUNK}
    v_add_u32 v2, s3, v1
    v_and_b32 v3, 255, v0
    v_lshlrev_b32 v3, 2, v3
    v_mov_b32 v4, 0
    ds_write_b32 v3, v4 offset:{K1_CNT}
    v_cmp_gt_u32 vcc, {E}, v2
    s_movk_i32 s18, {CHUNK//8}
    v_cmp_gt_u32 s[20:21], s18, v0
    s_and_b64 s[20:21], s[20:21], vcc
    v_lshlrev_b32 v5, 2, v2
    v_lshlrev_b32 v6, 1, v2
    s_waitcnt lgkmcnt(0)
    s_mov_b64 s[22:23], exec
    s_mov_b64 exec, s[20:21]
    s_cbranch_execz K1_BIN_NOLOAD
    global_load_dwordx4 v[8:11], v5, s[10:11]            ; dst 0..3
    global_load_dwordx4 v[12:15], v5, s[10:11] offset:16 ; dst 4..7
    global_load_dwordx4 v[16:19], v5, s[8:9]             ; src 0..3
    global_load_dwordx4 v[20:23], v5, s[8:9] offset:16   ; src 4..7
    global_load_dwordx4 v[24:27], v6, s[6:7]             ; e 0..7
K1_BIN_NOLOAD:
    s_mov_b64 exec, s[22:23]
    s_barrier
    s_mov_b64 exec, s[20:21]
    s_cbranch_execz K1_BIN_NOHIST
    s_mov_b32 s18, {MAGIC196}
    s_mov_b32 s19, {-NB & 0xffffffff}
    s_mov_b32 s24, 0xffff0000
    v_mov_b32 v7, 1
''')
    stamp(A,1)
    A('s_waitcnt vmcnt(3)')
    stamp(A,2)
    for k in range(8):
        if k == 4:
            pass
        A(f'v_mul_u32_u24 v{28+k}, s18, v{8+k}')
        A(f'v_lshrrev_b32 v{28+k}, 24, v{28+k}')
        A(f'v_mad_i32_i24 v{8+k}, v{28+k}, s19, v{8+k}')
        A(f'v_lshlrev_b32 v{28+k}, 2, v{28+k}')
        A(f'ds_add_rtn_u32 v{36+k}, v{28+k}, v7 offset:{K1_CNT}')
    A('s_waitcnt vmcnt(0)')
    for k in range(8):
        ed = 24 + k//2
        if k % 2 == 0:
            A(f'v_lshl_or_b32 v{16+k}, v{ed}, 16, v{16+k}')
        else:
            A(f'v_and_or_b32 v{16+k}, v{ed}, s24, v{16+k}')
    A(f'''
K1_BIN_NOHIST:
    s_mov_b64 exec, s[22:23]
    s_waitcnt lgkmcnt(0)
''')
    stamp(A,3)
    A(f'''
    s_barrier
    v_readfirstlane_b32 s25, v0
    s_cmp_ge_u32 s25, 64
    s_cbranch_scc1 K1_BIN_NOSCAN
    v_lshlrev_b32 v44, 4, v0
    ds_read_b128 v[48:51], v44 offset:{K1_CNT}
    s_waitcnt lgkmcnt(0)
    v_add_u32 v52, v48, v49               ; p2
    v_add_u32 v53, v52, v50               ; p3
    v_add_u32 v54, v53, v51               ; tot
    v_mov_b32 v55, v54
''')
    scan64(A, 55)
    A(f'''
    v_sub_u32 v56, v55, v54
    v_add_u32 v57, v56, v48
    v_add_u32 v58, v56, v52
    v_add_u32 v59, v56, v53
    ds_write_b128 v44, v[56:59] offset:{K1_OFF}
    v_lshl_or_b32 v48, v48, 16, v56
    v_lshl_or_b32 v49, v49, 16, v57
    v_lshl_or_b32 v50, v50, 16, v58
    v_lshl_or_b32 v51, v51, 16, v59
    s_lshl_b32 s26, s2, 10
    s_add_u32 s26, s26, {WS_SEG}
    v_add_u32 v45, s26, v44
    global_store_dwordx4 v45, v[48:51], s[16:17]
    s_waitcnt lgkmcnt(0)
K1_BIN_NOSCAN:
    s_barrier
    s_mov_b64 exec, s[20:21]
    s_cbranch_execz K1_BIN_NOSCAT
''')
    for k in range(8):
        A(f'ds_read_b32 v{28+k}, v{28+k} offset:{K1_OFF}')
    for k in range(8):
        A(f's_waitcnt lgkmcnt({7-k})')
        A(f'v_add_lshl_u32 v{28+k}, v{28+k}, v{36+k}, 3')
        A(f'v_mov_b32 v{44+2*k}, v{16+k}')
        A(f'v_mov_b32 v{45+2*k}, v{8+k}')
    for k in range(8):
        A(f'ds_write_b64 v{28+k}, v[{44+2*k}:{45+2*k}] offset:{K1_STAGE}')
    A(f'''
K1_BIN_NOSCAT:
    s_mov_b64 exec, s[22:23]
    s_waitcnt lgkmcnt(0)
    s_barrier
''')
    stamp(A,4)
    A(f'''
    v_lshlrev_b32 v1, 4, v0                ; 16*t
    s_mul_i32 s26, s2, {CHUNK*8}
    s_add_u32 s26, s26, {WS_REC}
    v_add_u32 v2, s26, v1
    ds_read_b128 v[8:11], v1 offset:{K1_STAGE}
    ds_read_b128 v[12:15], v1 offset:{K1_STAGE+8192}
    ds_read_b128 v[16:19], v1 offset:{K1_STAGE+16384}
    v_cmp_gt_u32 vcc, 32, v0
    s_and_saveexec_b64 s[22:23], vcc
    s_cbranch_execz K1_BIN_SK4
    ds_read_b128 v[20:23], v1 offset:{K1_STAGE+24576}
    v_add_u32 v3, 24576, v2
    s_waitcnt lgkmcnt(0)
    global_store_dwordx4 v3, v[20:23], s[16:17]
K1_BIN_SK4:
    s_mov_b64 exec, s[22:23]
    v_add_u32 v3, 8192, v2
    v_add_u32 v4, 16384, v2
    s_waitcnt lgkmcnt(0)
    global_store_dwordx4 v2, v[8:11], s[16:17]
    global_store_dwordx4 v3, v[12:15], s[16:17]
    global_store_dwordx4 v4, v[16:19], s[16:17]
''')
    if asm.STAMPS:
        A('s_waitcnt vmcnt(0)')
    stamp(A,5)
    flush_stamps(A, 6, 16, 0)
    A('s_endpgm')
    A('''
K1_NOTBIN:
    s_cmp_ge_u32 s2, 512
    s_cbranch_scc1 K1_PREP
''')
    A(f'''
    v_lshlrev_b32 v1, 4, v0
    v_lshrrev_b32 v2, 6, v0
    s_nop 0
    v_readfirstlane_b32 s3, v2
    s_sub_u32 s18, s2, 256
    s_mul_i32 s18, s18, {NB}
    s_lshl_b32 s19, s3, 5                 ; 32*wave
    v_and_b32 v3, 31, v0                  ; n
    v_add_u32 v4, s19, v3
    v_add_u32 v5, s18, v4
    v_bfe_u32 v6, v0, 5, 1                ; kh / h
    s_waitcnt lgkmcnt(0)
    global_load_dwordx4 v[8:11], v1, s[12:13]
''')
    srd(A, 20, 4, N*128)
    A(f'''
    s_add_u32 s24, s16, {WS_PT}
    s_addc_u32 s25, s17, 0
    s_and_b32 s25, s25, 0xffff
    s_mov_b32 s26, {N*128}
    s_mov_b32 s27, 0x20000
    v_lshlrev_b32 v7, 7, v5               ; node*128
    v_lshl_add_u32 v12, v6, 4, v7         ; + kh*16
    s_cmp_ge_u32 s3, 7
    s_cbranch_scc1 K1_P_NOX
    buffer_load_dwordx4 v[16:19], v12, s[20:23], 0 offen
    buffer_load_dwordx4 v[20:23], v12, s[20:23], 0 offen offset:32
    buffer_load_dwordx4 v[24:27], v12, s[20:23], 0 offen offset:64
    buffer_load_dwordx4 v[28:31], v12, s[20:23], 0 offen offset:96
    s_waitcnt vmcnt(4)
    ds_write_b128 v1, v[8:11]
    s_waitcnt lgkmcnt(0)
    s_barrier
    s_branch K1_P_GO
K1_P_NOX:
    s_waitcnt vmcnt(0)
    ds_write_b128 v1, v[8:11]
    s_waitcnt lgkmcnt(0)
    s_barrier
    s_endpgm
K1_P_GO:
''')
    stamp(A,1)
    def tr_addr(A, vd, vt1, vt2):
        A(f'''
    v_and_b32 v{vt1}, 63, v0
    v_bfe_u32 v{vd}, v{vt1}, 2, 2          ; r
    v_bfe_u32 v{vt2}, v{vt1}, 5, 1         ; kh
    v_lshl_add_u32 v{vd}, v{vt2}, 3, v{vd} ; 8kh + r
    v_lshlrev_b32 v{vd}, 7, v{vd}          ; *128 bytes
    v_and_b32 v{vt2}, 1, v{vt1}            ; c&1
    v_lshl_add_u32 v{vd}, v{vt2}, 6, v{vd} ; +32*2*(c&1)
    v_bfe_u32 v{vt2}, v{vt1}, 4, 1         ; G&1
    v_lshl_add_u32 v{vd}, v{vt2}, 4, v{vd} ; +4*2*2*(G&1)=16
    v_bfe_u32 v{vt2}, v{vt1}, 1, 1         ; c>>1
    v_lshl_add_u32 v{vd}, v{vt2}, 3, v{vd} ; +4*2*(c>>1)=8
''')
    tr_addr(A, 13, 14, 15)
    for t in range(2):
        for s in range(4):
            base = 32 + (t*4+s)*4
            for q in range(2):
                off = (16*s + 4*q)*128 + 16*t*2
                A(f'ds_read_b64_tr_b16 v[{base+2*q}:{base+2*q+1}], v13 offset:{off}')
    for i in range(32):
        A(f'v_mov_b32 v{64+i}, 0')
    A('s_waitcnt vmcnt(0) lgkmcnt(0)')
    stamp(A,2)
    for s in range(4):
        for t in range(2):
            base = 32 + (t*4+s)*4
            A(f'v_mfma_f32_32x32x16_bf16 v[{64+16*t}:{79+16*t}], v[{base}:{base+3}], v[{16+4*s}:{19+4*s}], v[{64+16*t}:{79+16*t}]')
    A('s_nop 15')
    A(f's_mov_b32 s18, {NLOG2E}')
    A('s_mov_b32 s19, 0x7fffffff')
    A('s_mov_b32 s28, 0xffff0000')
    A('s_mov_b32 s29, 0x8000')
    A('s_mov_b32 s30, 0x80000000')
    for i in range(32):
        A(f'v_mul_f32 v{64+i}, s18, v{64+i}')
    def near(dst16, T, L, tmp1, tmp2):
        A(f'v_and_b32 v{tmp1}, s19, v{T}')
        A(f'v_add_u32 v{tmp1}, s29, v{tmp1}')
        A(f'v_sub_u32_e64 v{tmp1}, v{tmp1}, v{L} clamp')
        A(f'v_and_or_b32 v{tmp1}, v{tmp1}, s28, v{L}')
        A(f'v_and_or_b32 v{dst16}, v{T}, s30, v{tmp1}')
    for t in range(2):
        for cc in range(2):
            o = 32 + (t*2+cc)*4
            for pr in range(2):
                b0, b1 = 2*pr, 2*pr+1
                hi0, lo0 = 64+16*t+8*cc+b0, 64+16*t+8*cc+4+b0
                hi1, lo1 = 64+16*t+8*cc+b1, 64+16*t+8*cc+4+b1
                A(f'v_cvt_pk_bf16_f32 v48, v{lo0}, v{lo0}')
                A('v_and_b32 v48, 0xffff, v48')
                near(o+b0, hi0, 48, 49, 50)
                A(f'v_lshrrev_b32 v51, 16, v{o+b0}')
                near(52, lo1, 51, 49, 50)
                A('v_lshrrev_b32 v52, 16, v52')
                near(o+b1, hi1, 52, 49, 50)
    A(f'''
    s_movk_i32 s18, {NB}
    v_cmp_gt_u32 vcc, s18, v4
    s_and_saveexec_b64 s[22:23], vcc
    s_cbranch_execz K1_END
    v_lshl_add_u32 v12, v6, 6, v7          ; node*128 + 64h
    buffer_store_dwordx4 v[32:35], v12, s[24:27], 0 offen
    buffer_store_dwordx4 v[36:39], v12, s[24:27], 0 offen offset:16
    buffer_store_dwordx4 v[40:43], v12, s[24:27], 0 offen offset:32
    buffer_store_dwordx4 v[44:47], v12, s[24:27], 0 offen offset:48
''')
    stamp(A,3)
    if asm.STAMPS:
        A('s_waitcnt vmcnt(0)')
    stamp(A,4)
    stamp(A,5)
    flush_stamps(A, 6, 16, 0)
    A('s_endpgm')
    A(f'''
K1_PREP:
    v_lshlrev_b32 v1, 4, v0
    v_lshrrev_b32 v2, 6, v0
    s_nop 0
    v_readfirstlane_b32 s3, v2
    s_waitcnt lgkmcnt(0)
    v_add_u32 v2, 8192, v1
    global_load_dwordx4 v[8:11], v2, s[12:13]      ; W2 rows 64..127
    global_load_dwordx4 v[12:15], v1, s[14:15]
    global_load_dwordx4 v[16:19], v2, s[14:15]
    s_waitcnt vmcnt(0)
    ds_write_b128 v1, v[8:11]
    ds_write_b128 v1, v[12:15] offset:8192
    ds_write_b128 v1, v[16:19] offset:16384
    s_waitcnt lgkmcnt(0)
    s_barrier
''')
    tr_addr(A, 13, 14, 15)
    A('''
    v_and_b32 v1, 63, v0
    v_lshlrev_b32 v1, 4, v1               ; lane*16
    s_mul_i32 s18, s3, 3
''')
    for j in range(3):
        A(f'''
    s_add_u32 s19, s18, {j}               ; f
    s_cmp_lt_u32 s19, 8
    s_cbranch_scc1 K1_PREP_A{j}
    s_sub_u32 s20, s19, 8
    s_lshr_b32 s21, s20, 3                ; t
    s_and_b32 s20, s20, 7                 ; s
    s_lshl_b32 s20, s20, 11               ; 16*s*128
    s_add_u32 s20, s20, 8192
    s_branch K1_PREP_B{j}
K1_PREP_A{j}:
    s_lshr_b32 s21, s19, 2
    s_and_b32 s20, s19, 3
    s_lshl_b32 s20, s20, 11
K1_PREP_B{j}:
    s_lshl_b32 s21, s21, 5                ; 16*t*2 bytes
    s_add_u32 s20, s20, s21
    v_add_u32 v14, s20, v13
    ds_read_b64_tr_b16 v[16:17], v14
    ds_read_b64_tr_b16 v[18:19], v14 offset:512
    s_lshl_b32 s19, s19, 10
    s_add_u32 s19, s19, {WS_FRAG}
    v_add_u32 v15, s19, v1
    s_waitcnt lgkmcnt(0)
    global_store_dwordx4 v15, v[16:19], s[16:17]
    s_nop 1
''')
    A('''
K1_END:
    s_endpgm
''')
```

```python
from asm import *
import asm
from consts import *
from k1 import srd, scan64

S_B = 2
S_WAVE = 3
S_X = 4
S_WM = 6
S_OUT = 8
S_WS = 10
SRD_X = 12
SRD_PT = 16
SRD_PTR = 20
SRD_OUT = 24
S_PASS = 28
S_J = 29
S_MAX = 30
S_PF = 31
S_MORE = 32
S_G = 33
S_NB0 = 34
S_LN2 = 36
S_CLS = 38
S_T0 = 40
V_S = 32; V_N = 64; V_D = 72; V_Q = 80; V_W = 88; V_U = 96; V_X = 104
V_P0 = 112; V_P1 = 114; V_E = 116; V_A = 118; V_DEG = 119; V_AGG = 120; V_C16 = 121

def gen_k2(A):
    A('''
.globl k2_kernel
.p2align 8
.type k2_kernel,@function
k2_kernel:
''')
    stamp(A, 0)
    A(f'''
    s_cmp_ge_u32 s2, 256
    s_cbranch_scc1 K2_END
    s_load_dwordx2 s[4:5], s[0:1], 0
    s_load_dwordx2 s[6:7], s[0:1], 32
    s_load_dwordx2 s[8:9], s[0:1], 48
    s_load_dwordx2 s[10:11], s[0:1], 64
    v_lshrrev_b32 v1, 6, v0
    s_mul_i32 s{S_NB0}, s2, {NB}
    v_readfirstlane_b32 s{S_WAVE}, v1
    s_mov_b32 s{S_PASS}, 0
    s_mov_b32 s{S_LN2}, {NLN2}
    s_mov_b32 s{S_LN2+1}, {NLN2}
    s_movk_i32 s{S_CLS}, 0x207
    v_and_b32 v2, 7, v0
    v_lshlrev_b32 v{V_C16}, 4, v2          ; c*16
    v_mov_b32 v{V_P0+1}, v{V_C16}
    v_mov_b32 v{V_P1+1}, v{V_C16}
    v_mov_b32 v{V_E}, 0
    v_mov_b32 v{V_E+1}, 0
    s_waitcnt lgkmcnt(0)
''')
    srd(A, SRD_X, S_X, N*128)
    A(f'''
    s_add_u32 s{SRD_PT}, s{S_WS}, {WS_PT}
    s_addc_u32 s{SRD_PT+1}, s{S_WS+1}, 0
    s_and_b32 s{SRD_PT+1}, s{SRD_PT+1}, 0xffff
    s_mov_b32 s{SRD_PTR}, s{SRD_PT}
    s_mov_b32 s{SRD_PTR+1}, s{SRD_PT+1}
    s_or_b32 s{SRD_PT+1}, s{SRD_PT+1}, {128<<16}
    s_mov_b32 s{SRD_PT+2}, {N}
    s_mov_b32 s{SRD_PT+3}, 0x20000
    s_mov_b32 s{SRD_PTR+2}, {N*128}
    s_mov_b32 s{SRD_PTR+3}, 0x20000
''')
    srd(A, SRD_OUT, S_OUT, N*128)
    A(f'''
    v_add_u32 v2, {128*128}, v{V_C16}
    global_load_dwordx4 v[84:87], v2, s[{S_WM}:{S_WM+1}]
''')
    A(f'''
K2_PASS:
    v_lshrrev_b32 v1, 4, v0
    v_lshlrev_b32 v2, 10, v1               ; *1024
    s_lshl_b32 s{S_T0}, s2, 2
    s_add_u32 s{S_T0}, s{S_T0}, {WS_SEG}
    v_add_u32 v2, s{S_T0}, v2
    global_load_dword v4, v2, s[{S_WS}:{S_WS+1}]
    v_add_u32 v3, 0x10000, v2
    global_load_dword v5, v3, s[{S_WS}:{S_WS+1}]
    v_add_u32 v3, 0x20000, v2
    global_load_dword v6, v3, s[{S_WS}:{S_WS+1}]
    v_add_u32 v3, 0x30000, v2
    global_load_dword v7, v3, s[{S_WS}:{S_WS+1}]
''')
    A(f'''
    s_cmp_lg_u32 s{S_PASS}, 0
    s_cbranch_scc1 K2_NOQLOAD
    s_cmp_ge_u32 s{S_WAVE}, 14
    s_cbranch_scc1 K2_NOQLOAD
    s_lshr_b32 s{S_T0}, s{S_WAVE}, 1
    s_lshl_b32 s{S_T0}, s{S_T0}, 5          ; 32*tile
    v_and_b32 v24, 31, v0
    v_add_u32 v24, s{S_T0}, v24             ; nloc
    v_add_u32 v25, s{S_NB0}, v24            ; node
    v_bfe_u32 v26, v0, 5, 1                 ; kh
    v_lshlrev_b32 v25, 7, v25
    v_lshl_add_u32 v25, v26, 4, v25
    buffer_load_dwordx4 v[32:35], v25, s[{SRD_X}:{SRD_X+3}], 0 offen
    buffer_load_dwordx4 v[36:39], v25, s[{SRD_X}:{SRD_X+3}], 0 offen offset:32
    buffer_load_dwordx4 v[40:43], v25, s[{SRD_X}:{SRD_X+3}], 0 offen offset:64
    buffer_load_dwordx4 v[44:47], v25, s[{SRD_X}:{SRD_X+3}], 0 offen offset:96
    s_and_b32 s{S_T0+1}, s{S_WAVE}, 1
    s_lshl_b32 s{S_T0+1}, s{S_T0+1}, 12     ; t*4*1024
    s_add_u32 s{S_T0+1}, s{S_T0+1}, {WS_FRAG}
    v_and_b32 v27, 63, v0
    v_lshlrev_b32 v27, 4, v27
    v_add_u32 v27, s{S_T0+1}, v27
    global_load_dwordx4 v[48:51], v27, s[{S_WS}:{S_WS+1}]
    global_load_dwordx4 v[52:55], v27, s[{S_WS}:{S_WS+1}] offset:1024
    global_load_dwordx4 v[56:59], v27, s[{S_WS}:{S_WS+1}] offset:2048
    global_load_dwordx4 v[60:63], v27, s[{S_WS}:{S_WS+1}] offset:3072
    s_waitcnt vmcnt(8)
    s_branch K2_SEGOK
K2_NOQLOAD:
    s_waitcnt vmcnt(0)
K2_SEGOK:
''')
    stamp(A, 1)
    A(f'''
    v_mov_b32 v3, 0
    v_lshlrev_b32 v2, 2, v0
    v_cmp_gt_u32 vcc, 256, v0
    s_and_saveexec_b64 s[{S_T0}:{S_T0+1}], vcc
    v_add_u32 v2, {K2_CNT}, v2
    ds_write_b32 v2, v3
    s_mov_b64 exec, s[{S_T0}:{S_T0+1}]
    v_cmp_gt_u32 vcc, 80, v0
    s_and_saveexec_b64 s[{S_T0}:{S_T0+1}], vcc
    v_lshlrev_b32 v2, 2, v0
    v_add_u32 v2, {K2_BINS}, v2
    ds_write_b32 v2, v3
    s_mov_b64 exec, s[{S_T0}:{S_T0+1}]
''')
    A(f'''
    v_and_b32 v28, 15, v0                   ; i
    s_lshl_b32 s{S_T0}, s{S_PASS}, 5
    v_add_u32 v28, s{S_T0}, v28             ; i + 32p
    v_lshrrev_b32 v29, 4, v0                ; s
    s_mov_b32 s{S_T0+2}, {CHUNK*8}
    v_mul_lo_u32 v29, v29, s{S_T0+2}        ; s*25088
    s_mov_b32 s{S_T0+3}, 0xffffff00
''')
    srd(A, 44, S_WS, 256*CHUNK*8)
    for rho in range(4):
        A(f'''
    v_lshrrev_b32 v30, 16, v{4+rho}         ; len
    v_and_b32 v31, 0xffff, v{4+rho}         ; start
    v_add_u32 v31, v31, v28                 ; start+slot
    v_lshl_add_u32 v31, v31, 3, v29
    v_add_u32 v31, {rho*64*CHUNK*8}, v31
    v_cmp_lt_u32 s[{48+4*rho}:{49+4*rho}], v28, v30
    v_add_u32 v1, 16, v28
    v_cmp_lt_u32 s[{50+4*rho}:{51+4*rho}], v1, v30
    v_add_u32 v1, 32, v28
    v_cmp_lt_u32 vcc, v1, v30
    v_mov_b32 v2, s{S_T0+3}
    v_cndmask_b32_e64 v3, v2, v31, s[{48+4*rho}:{49+4*rho}]
    v_add_u32 v31, 128, v31
    v_cndmask_b32_e64 v2, v2, v31, s[{50+4*rho}:{51+4*rho}]
    buffer_load_dwordx2 v[{8+4*rho}:{9+4*rho}], v3, s[44:47], 0 offen
    buffer_load_dwordx2 v[{10+4*rho}:{11+4*rho}], v2, s[44:47], 0 offen
''')
        if rho == 0:
            A(f's_mov_b64 s[{S_T0}:{S_T0+1}], vcc')
        else:
            A(f's_or_b64 s[{S_T0}:{S_T0+1}], s[{S_T0}:{S_T0+1}], vcc')
    A(f'''
    s_waitcnt lgkmcnt(0)
    s_barrier
''')
    stamp(A, 2)
    A(f'''
    s_cmp_eq_u64 s[{S_T0}:{S_T0+1}], 0
    s_cbranch_scc1 K2_NOMORE
    v_mov_b32 v1, {K2_MISC+4}
    v_mov_b32 v2, 1
    ds_write_b32 v1, v2
K2_NOMORE:
''')
    A(f'''
    s_cmp_lg_u32 s{S_PASS}, 0
    s_cbranch_scc1 K2_NOQ
    s_cmp_ge_u32 s{S_WAVE}, 14
    s_cbranch_scc1 K2_W3
''')
    for i in range(16):
        A(f'v_mov_b32 v{64+i}, 0')
    A('s_waitcnt vmcnt(8)')
    A('s_nop 1')
    for s in range(4):
        A(f'v_mfma_f32_32x32x16_bf16 v[64:79], v[{48+4*s}:{51+4*s}], v[{32+4*s}:{35+4*s}], v[64:79]')
    A(f'''
    s_and_b32 s{S_T0+1}, s{S_WAVE}, 1       ; t
    s_lshl_b32 s{S_T0+1}, s{S_T0+1}, 5      ; 2t*16
    v_mul_u32_u24 v1, {ROWB}, v24           ; nloc*272
    v_lshl_add_u32 v1, v26, 6, v1           ; + 4h*16
    v_add_u32 v1, s{S_T0+1}, v1
    s_mov_b32 s{S_T0+2}, {NLOG2E}
    v_cmp_gt_u32 vcc, 200, v24
    s_nop 7
    s_nop 3
''')
    for i in range(16):
        A(f'v_mul_f32 v{64+i}, s{S_T0+2}, v{64+i}')
    A(f's_and_saveexec_b64 s[{S_T0+4}:{S_T0+5}], vcc')
    for a in range(4):
        off = (a & 1)*128 + (a >> 1)*16 + K2_Q
        A(f'ds_write_b128 v1, v[{64+4*a}:{67+4*a}] offset:{off}')
    A(f'''
    s_mov_b64 exec, s[{S_T0+4}:{S_T0+5}]
K2_W3:
    s_waitcnt vmcnt(8)
    s_mov_b32 s{S_T0+2}, {NLOG2E}
    s_mov_b32 s{S_T0+3}, 0xffff0000
''')
    for k in range(4):
        A(f'v_lshlrev_b32 v{V_W+2*k}, 16, v{84+k}')
        A(f'v_and_b32 v{V_W+2*k+1}, s{S_T0+3}, v{84+k}')
    for r in range(8):
        A(f'v_mul_f32 v{V_W+r}, s{S_T0+2}, v{V_W+r}')
    A('K2_NOQ:')
    A(f'''
    v_mov_b32 v1, 1
    s_waitcnt vmcnt(0)
''')
    stamp(A, 3)
    for rho in range(4):
        for m in range(2):
            k = 2*rho + m
            rec = 8 + 4*rho + 2*m
            msk = 48 + 4*rho + 2*m
            A(f'''
    s_mov_b64 exec, s[{msk}:{msk+1}]
    v_lshlrev_b32 v{rec+1}, 2, v{rec+1}
    v_add_u32 v{rec+1}, {K2_CNT}, v{rec+1}
    ds_add_rtn_u32 v{24+k}, v{rec+1}, v1
''')
    A(f'''
    s_mov_b64 exec, -1
    s_waitcnt lgkmcnt(0)
    s_barrier
''')
    stamp(A, 4)
    A(f'''
    s_cmp_eq_u32 s{S_WAVE}, 0
    s_cbranch_scc0 K2_NOTW0
    v_lshlrev_b32 v1, 4, v0
    v_add_u32 v1, {K2_CNT}, v1
    ds_read_b128 v[32:35], v1
    s_waitcnt lgkmcnt(0)
    v_add_u32 v36, v32, v33
    v_add_u32 v37, v36, v34
    v_add_u32 v38, v37, v35
    v_mov_b32 v39, v38
''')
    scan64(A, 39)
    A(f'''
    v_sub_u32 v40, v39, v38
    v_add_u32 v41, v40, v32
    v_add_u32 v42, v40, v36
    v_add_u32 v43, v40, v37
    ds_write_b128 v1, v[40:43] offset:1024
    s_branch K2_SORTDONE
K2_NOTW0:
    s_cmp_eq_u32 s{S_WAVE}, 1
    s_cbranch_scc0 K2_SORTDONE
    v_and_b32 v2, 63, v0                     ; lane
    v_lshlrev_b32 v1, 4, v2
    v_add_u32 v1, {K2_CNT}, v1
    ds_read_b128 v[32:35], v1
    v_mov_b32 v3, 1
    s_waitcnt lgkmcnt(0)
''')
    for k in range(4):
        A(f'''
    v_min_u32 v{36+k}, 63, v{32+k}
    v_sub_u32 v{36+k}, 63, v{36+k}
    v_lshlrev_b32 v{36+k}, 2, v{36+k}
    v_add_u32 v{36+k}, {K2_BINS}, v{36+k}
    ds_add_rtn_u32 v{40+k}, v{36+k}, v3
''')
    A(f'''
    v_lshlrev_b32 v4, 2, v2
    v_add_u32 v4, {K2_BINS}, v4
    s_waitcnt lgkmcnt(0)
    ds_read_b32 v5, v4
    s_waitcnt lgkmcnt(0)
    v_mov_b32 v6, v5
''')
    scan64(A, 6)
    A(f'''
    v_sub_u32 v6, v6, v5
    ds_write_b32 v4, v6
    s_waitcnt lgkmcnt(0)
''')
    for k in range(4):
        A(f'ds_read_b32 v{44+k}, v{36+k}')
    A('s_waitcnt lgkmcnt(0)')
    for k in range(4):
        A(f'''
    v_add_u32 v{44+k}, v{44+k}, v{40+k}
    v_lshlrev_b32 v{44+k}, 2, v{44+k}
    v_add_u32 v{44+k}, {K2_ORD}, v{44+k}
    v_lshl_add_u32 v{36+k}, v2, 2, {k}
    ds_write_b32 v{44+k}, v{36+k}
''')
    A(f'''
K2_SORTDONE:
    s_waitcnt lgkmcnt(0)
    s_barrier
''')
    stamp(A, 5)
    for rho in range(4):
        for m in range(2):
            k = 2*rho + m
            rec = 8 + 4*rho + 2*m
            msk = 48 + 4*rho + 2*m
            A(f'''
    s_mov_b64 exec, s[{msk}:{msk+1}]
    ds_read_b32 v{rec+1}, v{rec+1} offset:1024
''')
    A('s_waitcnt lgkmcnt(0)')
    for rho in range(4):
        for m in range(2):
            k = 2*rho + m
            rec = 8 + 4*rho + 2*m
            msk = 48 + 4*rho + 2*m
            A(f'''
    s_mov_b64 exec, s[{msk}:{msk+1}]
''')
            A(f'''
    v_add_lshl_u32 v{rec+1}, v{rec+1}, v{24+k}, 1
    v_add_u32 v{rec+1}, {K2_SRC}, v{rec+1}
    ds_write_b16 v{rec+1}, v{rec}
    ds_write_b16_d16_hi v{rec+1}, v{rec} offset:16384
''')
    A(f'''
    s_mov_b64 exec, -1
    v_mov_b32 v1, {K2_MISC+4}
    ds_read_b32 v2, v1
    s_waitcnt lgkmcnt(0)
    v_readfirstlane_b32 s{S_MORE}, v2
    s_barrier
''')
    stamp(A, 6)
    A(f'''
K2_GROUP:
    v_mov_b32 v1, {K2_MISC}
    v_mov_b32 v2, 1
    s_mov_b64 exec, 1
    ds_add_rtn_u32 v3, v1, v2
    s_mov_b64 exec, -1
    s_waitcnt lgkmcnt(0)
    v_readfirstlane_b32 s{S_G}, v3
    s_nop 3
    s_cmp_ge_u32 s{S_G}, {NGROUPS}
    s_cbranch_scc1 K2_GROUPS_DONE
    v_bfe_u32 v1, v0, 3, 3
    s_lshl_b32 s{S_T0}, s{S_G}, 3
    v_add_u32 v1, s{S_T0}, v1
    v_lshlrev_b32 v1, 2, v1
    v_add_u32 v1, {K2_ORD}, v1
    ds_read_b32 v2, v1
    s_waitcnt lgkmcnt(0)
    v_min_u32 v2, 199, v2
    v_lshlrev_b32 v3, 2, v2
    v_add_u32 v3, {K2_CNT}, v3
    ds_read_b32 v{V_DEG}, v3
    ds_read_b32 v{V_A}, v3 offset:1024
    v_mul_u32_u24 v4, {ROWB}, v2
    v_add_u32 v4, v4, v{V_C16}               ; node*272 + c*16
    ds_read_b128 v[{V_Q}:{V_Q+3}], v4 offset:{K2_Q}
    ds_read_b128 v[{V_Q+4}:{V_Q+7}], v4 offset:{K2_Q+128}
    v_add_u32 v{V_AGG}, {K2_AGG}, v4
    s_waitcnt lgkmcnt(2)
    v_lshlrev_b32 v{V_A}, 1, v{V_A}
    v_add_u32 v{V_A}, {K2_SRC}, v{V_A}
''')
    for j in range(8):
        A(f'ds_read_u16 v{V_U+j}, v{V_A} offset:{2*j}')
    A(f'''
    ds_read_u16 v{V_P0}, v{V_A} offset:16
    ds_read_u16_d16_hi v{V_E}, v{V_A} offset:16384
''')
    for k in range(8):
        A(f'v_readlane_b32 s{S_T0+k}, v{V_DEG}, {8*k}')
    A(f'''
    s_max_u32 s{S_T0}, s{S_T0}, s{S_T0+1}
    s_max_u32 s{S_T0+2}, s{S_T0+2}, s{S_T0+3}
    s_max_u32 s{S_T0+4}, s{S_T0+4}, s{S_T0+5}
    s_max_u32 s{S_T0+6}, s{S_T0+6}, s{S_T0+7}
    s_max_u32 s{S_T0}, s{S_T0}, s{S_T0+2}
    s_max_u32 s{S_T0+4}, s{S_T0+4}, s{S_T0+6}
    s_max_u32 s{S_MAX}, s{S_T0}, s{S_T0+4}
    s_sub_i32 s{S_PF}, s{S_MAX}, 8
    s_mov_b32 s{S_J}, 0
''')
    for i in range(8):
        A(f'v_mov_b32 v{V_N+i}, 0')
        A(f'v_mov_b32 v{V_D+i}, 1.0')
    A(f'''
    s_cmp_eq_u32 s{S_MAX}, 0
    s_cbranch_scc1 K2_CLOSE_EMPTY
    s_waitcnt lgkmcnt(2)
''')
    for j in range(8):
        A(f'v_lshl_add_u32 v{V_U+j}, v{V_U+j}, 7, v{V_C16}')
        A(f'buffer_load_dwordx4 v[{V_S+4*j}:{V_S+4*j+3}], v{V_U+j}, s[{SRD_PTR}:{SRD_PTR+3}], 0 offen')
    A('K2_LOOP:')
    for rho in range(8):
        S = V_S + 4*rho
        P = V_P0 if rho % 2 == 0 else V_P1
        Pn = V_P1 if rho % 2 == 0 else V_P0
        sel = rho & 1
        A(f'''
    s_waitcnt vmcnt(7) lgkmcnt(0)
    v_lshlrev_b64 v[{V_X}:{V_X+1}], 16, v[{S}:{S+1}]
    v_lshlrev_b64 v[{V_X+2}:{V_X+3}], 16, v[{S+2}:{S+3}]
    v_pk_fma_f32 v[{V_U}:{V_U+1}], v[{V_E}:{V_E+1}], v[{V_W}:{V_W+1}], v[{S}:{S+1}] op_sel:[{sel},0,0] op_sel_hi:[{sel},1,1]
    v_pk_fma_f32 v[{V_U+2}:{V_U+3}], v[{V_E}:{V_E+1}], v[{V_W+2}:{V_W+3}], v[{S+2}:{S+3}] op_sel:[{sel},0,0] op_sel_hi:[{sel},1,1]
    v_pk_fma_f32 v[{V_U+4}:{V_U+5}], v[{V_E}:{V_E+1}], v[{V_W+4}:{V_W+5}], v[{V_X}:{V_X+1}] op_sel:[{sel},0,0] op_sel_hi:[{sel},1,1]
    v_pk_fma_f32 v[{V_U+6}:{V_U+7}], v[{V_E}:{V_E+1}], v[{V_W+6}:{V_W+7}], v[{V_X+2}:{V_X+3}] op_sel:[{sel},0,0] op_sel_hi:[{sel},1,1]
    s_cmp_lt_i32 s{S_J}, s{S_PF}
    s_cbranch_scc0 K2_SKIP{rho}
    buffer_load_dwordx4 v[{S}:{S+3}], v[{P}:{P+1}], s[{SRD_PT}:{SRD_PT+3}], 0 idxen offen
K2_BACK{rho}:
    ds_read_u16 v{Pn}, v{V_A} offset:{2*(rho+9)}
    ds_read_u16_d16_hi v{V_E + ((rho+1)&1)}, v{V_A} offset:{16384 + 2*(rho+1)}
''')
        for k in range(4):
            A(f'v_pk_add_f32 v[{V_U+2*k}:{V_U+2*k+1}], v[{V_U+2*k}:{V_U+2*k+1}], v[{V_Q+2*k}:{V_Q+2*k+1}]')
        for r in range(8):
            A(f'v_exp_f32 v{V_X+r}, v{V_U+r}')
        A(f'''
    v_cmp_lt_u32 vcc, s{S_J}, v{V_DEG}
    s_add_u32 s{S_J}, s{S_J}, 1
    s_mov_b64 exec, vcc
''')
        for k in range(4):
            n, d, u, x = V_N+2*k, V_D+2*k, V_U+2*k, V_X+2*k
            A(f'v_pk_fma_f32 v[{n}:{n+1}], v[{n}:{n+1}], v[{x}:{x+1}], v[{n}:{n+1}]')
        for k in range(4):
            n, d, u, x = V_N+2*k, V_D+2*k, V_U+2*k, V_X+2*k
            A(f'v_pk_fma_f32 v[{n}:{n+1}], v[{u}:{u+1}], v[{d}:{d+1}], v[{n}:{n+1}]')
        for k in range(4):
            n, d, u, x = V_N+2*k, V_D+2*k, V_U+2*k, V_X+2*k
            A(f'v_pk_fma_f32 v[{d}:{d+1}], v[{d}:{d+1}], v[{x}:{x+1}], v[{d}:{d+1}]')
        A(f'''
    s_mov_b64 exec, -1
    s_cmp_eq_u32 s{S_J}, s{S_MAX}
    s_cbranch_scc1 K2_CLOSE
''')
    A(f'''
    v_add_u32 v{V_A}, 16, v{V_A}
    s_branch K2_LOOP
''')
    for rho in range(8):
        A(f'''
K2_SKIP{rho}:
    s_waitcnt vmcnt(0)
    s_branch K2_BACK{rho}
''')
    A(f'''
K2_CLOSE:
K2_CLOSE_EMPTY:
    s_waitcnt lgkmcnt(0)
''')
    for r in range(8):
        A(f'v_rcp_f32 v{V_X+r}, v{V_D+r}')
    A('s_nop 0')
    for k in range(4):
        A(f'v_pk_mul_f32 v[{V_X+2*k}:{V_X+2*k+1}], v[{V_X+2*k}:{V_X+2*k+1}], s[{S_LN2}:{S_LN2+1}]')
    for k in range(4):
        A(f'v_pk_mul_f32 v[{V_U+2*k}:{V_U+2*k+1}], v[{V_N+2*k}:{V_N+2*k+1}], v[{V_X+2*k}:{V_X+2*k+1}]')
    for k in range(4):
        A(f'v_pk_fma_f32 v[{V_X+2*k}:{V_X+2*k+1}], v[{V_D+2*k}:{V_D+2*k+1}], 0, v[{V_U+2*k}:{V_U+2*k+1}] op_sel_hi:[1,0,1]')
    A(f'''
    v_pk_add_f32 v[{V_X}:{V_X+1}], v[{V_X}:{V_X+1}], v[{V_X+2}:{V_X+3}]
    v_pk_add_f32 v[{V_X+4}:{V_X+5}], v[{V_X+4}:{V_X+5}], v[{V_X+6}:{V_X+7}]
    v_pk_add_f32 v[{V_X}:{V_X+1}], v[{V_X}:{V_X+1}], v[{V_X+4}:{V_X+5}]
    v_add_f32 v{V_X}, v{V_X}, v{V_X+1}
    v_cmp_class_f32_e64 vcc, v{V_X}, s{S_CLS}
    s_cbranch_vccnz K2_SLOW
K2_WRITE:
    s_cmp_eq_u32 s{S_PASS}, 0
    s_cbranch_scc1 K2_WR0
    ds_read_b128 v[{V_X}:{V_X+3}], v{V_AGG}
    ds_read_b128 v[{V_X+4}:{V_X+7}], v{V_AGG} offset:128
    s_waitcnt lgkmcnt(0)
''')
    for k in range(4):
        A(f'v_pk_add_f32 v[{V_U+2*k}:{V_U+2*k+1}], v[{V_U+2*k}:{V_U+2*k+1}], v[{V_X+2*k}:{V_X+2*k+1}]')
    A(f'''
K2_WR0:
    ds_write_b128 v{V_AGG}, v[{V_U}:{V_U+3}]
    ds_write_b128 v{V_AGG}, v[{V_U+4}:{V_U+7}] offset:128
    s_branch K2_GROUP
''')
    A(f'''
K2_SLOW:
    s_waitcnt vmcnt(0)
    s_sub_u32 s{S_T0}, s{S_MAX}, 1
    s_lshr_b32 s{S_T0}, s{S_T0}, 3
    s_lshl_b32 s{S_T0}, s{S_T0}, 4
    v_subrev_u32 v{V_A}, s{S_T0}, v{V_A}
    s_mov_b32 s{S_J}, 0
''')
    for i in range(8):
        A(f'v_mov_b32 v{V_N+i}, 0')
    A(f'''
K2_SLOOP:
    ds_read_u16 v{V_P0}, v{V_A}
    ds_read_u16_d16_hi v{V_E}, v{V_A} offset:16384
    s_waitcnt lgkmcnt(0)
    buffer_load_dwordx4 v[{V_S}:{V_S+3}], v[{V_P0}:{V_P0+1}], s[{SRD_PT}:{SRD_PT+3}], 0 idxen offen
    s_waitcnt vmcnt(0)
    v_lshlrev_b64 v[{V_X}:{V_X+1}], 16, v[{V_S}:{V_S+1}]
    v_lshlrev_b64 v[{V_X+2}:{V_X+3}], 16, v[{V_S+2}:{V_S+3}]
    v_pk_fma_f32 v[{V_U}:{V_U+1}], v[{V_E}:{V_E+1}], v[{V_W}:{V_W+1}], v[{V_S}:{V_S+1}] op_sel:[0,0,0] op_sel_hi:[0,1,1]
    v_pk_fma_f32 v[{V_U+2}:{V_U+3}], v[{V_E}:{V_E+1}], v[{V_W+2}:{V_W+3}], v[{V_S+2}:{V_S+3}] op_sel:[0,0,0] op_sel_hi:[0,1,1]
    v_pk_fma_f32 v[{V_U+4}:{V_U+5}], v[{V_E}:{V_E+1}], v[{V_W+4}:{V_W+5}], v[{V_X}:{V_X+1}] op_sel:[0,0,0] op_sel_hi:[0,1,1]
    v_pk_fma_f32 v[{V_U+6}:{V_U+7}], v[{V_E}:{V_E+1}], v[{V_W+6}:{V_W+7}], v[{V_X+2}:{V_X+3}] op_sel:[0,0,0] op_sel_hi:[0,1,1]
''')
    for k in range(4):
        A(f'v_pk_add_f32 v[{V_U+2*k}:{V_U+2*k+1}], v[{V_U+2*k}:{V_U+2*k+1}], v[{V_Q+2*k}:{V_Q+2*k+1}]')
    for r in range(8):
        A(f'v_exp_f32 v{V_X+r}, v{V_U+r}')
    A('s_nop 0')
    for r in range(8):
        A(f'v_add_f32 v{V_X+r}, 1.0, v{V_X+r}')
    for r in range(8):
        A(f'v_rcp_f32 v{V_X+r}, v{V_X+r}')
    A(f'''
    v_cmp_lt_u32 vcc, s{S_J}, v{V_DEG}
    s_add_u32 s{S_J}, s{S_J}, 1
    s_mov_b64 exec, vcc
''')
    for r in range(8):
        A(f'v_fmac_f32 v{V_N+r}, v{V_U+r}, v{V_X+r}')
    A(f'''
    s_mov_b64 exec, -1
    v_add_u32 v{V_A}, 2, v{V_A}
    s_cmp_lt_u32 s{S_J}, s{S_MAX}
    s_cbranch_scc1 K2_SLOOP
''')
    for k in range(4):
        A(f'v_pk_mul_f32 v[{V_U+2*k}:{V_U+2*k+1}], v[{V_N+2*k}:{V_N+2*k+1}], s[{S_LN2}:{S_LN2+1}]')
    A('s_branch K2_WRITE')
    A(f'''
K2_GROUPS_DONE:
''')
    stamp(A, 7)
    A(f'''
    s_cmp_eq_u32 s{S_MORE}, 0
    s_cbranch_scc1 K2_EPI
    s_waitcnt lgkmcnt(0)
    s_barrier
    s_add_u32 s{S_PASS}, s{S_PASS}, 1
    s_branch K2_PASS
K2_EPI:
    s_cmp_ge_u32 s{S_WAVE}, 14
    s_cbranch_scc1 K2_EPI_IDLE
    s_lshr_b32 s{S_T0}, s{S_WAVE}, 1
    s_lshl_b32 s{S_T0}, s{S_T0}, 5          ; 32*tile
    v_and_b32 v24, 31, v0
    v_add_u32 v24, s{S_T0}, v24             ; nloc
    v_add_u32 v25, s{S_NB0}, v24            ; node
    v_bfe_u32 v26, v0, 5, 1                 ; kh
    v_lshlrev_b32 v25, 7, v25               ; node*128
    v_lshl_add_u32 v27, v26, 4, v25
    buffer_load_dwordx4 v[32:35], v27, s[{SRD_X}:{SRD_X+3}], 0 offen
    buffer_load_dwordx4 v[36:39], v27, s[{SRD_X}:{SRD_X+3}], 0 offen offset:32
    buffer_load_dwordx4 v[40:43], v27, s[{SRD_X}:{SRD_X+3}], 0 offen offset:64
    buffer_load_dwordx4 v[44:47], v27, s[{SRD_X}:{SRD_X+3}], 0 offen offset:96
    s_and_b32 s{S_T0+1}, s{S_WAVE}, 1
    s_lshl_b32 s{S_T0+2}, s{S_T0+1}, 13     ; t*8*1024
    s_add_u32 s{S_T0+2}, s{S_T0+2}, {WS_FRAG + 8*1024}
    v_and_b32 v28, 63, v0
    v_lshlrev_b32 v28, 4, v28
    v_add_u32 v28, s{S_T0+2}, v28
''')
    for s in range(8):
        if s == 4:
            A('v_add_u32 v28, 4096, v28')
        A(f'global_load_dwordx4 v[{64+4*s}:{67+4*s}], v28, s[{S_WS}:{S_WS+1}] offset:{1024*(s%4)}')
    A(f'''
    s_waitcnt lgkmcnt(0)
    s_barrier
''')
    stamp(A, 8)
    A(f'''
    v_mul_u32_u24 v1, {ROWB}, v24
    v_lshl_add_u32 v1, v26, 4, v1            ; + kh*16
    v_add_u32 v1, {K2_AGG}, v1
''')
    for s in range(4):
        A(f'ds_read_b128 v[{96+8*(s%2)}:{99+8*(s%2)}], v1 offset:{32*s}')
        A(f'ds_read_b128 v[{100+8*(s%2)}:{103+8*(s%2)}], v1 offset:{32*s+128}')
        if s % 2 == 1:
            A('s_waitcnt lgkmcnt(0)')
            for ss in (s-1, s):
                b = 96 + 8*(ss % 2)
                for k in range(4):
                    A(f'v_cvt_pk_bf16_f32 v{48+4*ss+k}, v{b+2*k}, v{b+2*k+1}')
    for i in range(16):
        A(f'v_mov_b32 v{96+i}, 0')
    A('s_waitcnt vmcnt(0)')
    A('s_nop 1')
    for s in range(8):
        A(f'v_mfma_f32_32x32x16_bf16 v[96:111], v[{64+4*s}:{67+4*s}], v[{32+4*s}:{35+4*s}], v[96:111]')
    A(f'''
    s_mov_b32 s{S_T0+2}, {NLOG2E}
    s_nop 7
    s_nop 3
''')
    for i in range(16):
        A(f'v_mul_f32 v{32+i}, s{S_T0+2}, v{96+i}')
    for i in range(16):
        A(f'v_exp_f32 v{32+i}, v{32+i}')
    A('s_nop 0')
    for i in range(16):
        A(f'v_add_f32 v{32+i}, 1.0, v{32+i}')
    for i in range(16):
        A(f'v_rcp_f32 v{32+i}, v{32+i}')
    A('s_nop 0')
    for i in range(16):
        A(f'v_mul_f32 v{32+i}, v{96+i}, v{32+i}')
    for k in range(8):
        A(f'v_cvt_pk_bf16_f32 v{48+k}, v{32+2*k}, v{33+2*k}')
    A(f'''
    s_movk_i32 s{S_T0}, {NB}
    v_cmp_gt_u32 vcc, s{S_T0}, v24
    v_lshl_add_u32 v25, v26, 6, v25          ; node*128 + 64h
    s_lshl_b32 s{S_T0+1}, s{S_T0+1}, 5       ; 32t bytes
    v_add_u32 v25, s{S_T0+1}, v25
    s_and_saveexec_b64 s[{S_T0+4}:{S_T0+5}], vcc
    s_cbranch_execz K2_FIN
    buffer_store_dwordx4 v[48:51], v25, s[{SRD_OUT}:{SRD_OUT+3}], 0 offen
    buffer_store_dwordx4 v[52:55], v25, s[{SRD_OUT}:{SRD_OUT+3}], 0 offen offset:16
K2_FIN:
''')
    if asm.STAMPS:
        A('s_mov_b64 exec, -1')
        A('s_waitcnt vmcnt(0)')
    stamp(A, 9)
    flush_stamps(A, 10, S_WS, 0x100000, tmpv=122)
    A(f'''
    s_endpgm
K2_EPI_IDLE:
    s_waitcnt lgkmcnt(0)
    s_barrier
''')
    stamp(A, 8)
    stamp(A, 9)
    flush_stamps(A, 10, S_WS, 0x100000, tmpv=122)
    A('''
K2_END:
    s_endpgm
''')
```

```python
import sys
sys.path.insert(0, 'gen')
from asm import *
import asm
from consts import *
import k1
try:
    import k2
except ImportError:
    k2 = None

HDR = open('standalone__mpnn_edge_mlp__graph.s.ref').read().split('; Override launch')[0]

def kd(name, vgpr, sgpr):
    acc = (vgpr + 3)//4*4
    return f'''.amdhsa_kernel {name}
  .amdhsa_next_free_vgpr {vgpr}
  .amdhsa_next_free_sgpr {sgpr}
  .amdhsa_accum_offset {acc}
  .amdhsa_group_segment_fixed_size 0
  .amdhsa_kernarg_size 72
  .amdhsa_user_sgpr_count 2
  .amdhsa_user_sgpr_kernarg_segment_ptr 1
  .amdhsa_system_sgpr_workgroup_id_x 1
  .amdhsa_float_denorm_mode_32 3
.end_amdhsa_kernel
'''

def build(path, only_k1=False):
    A = Asm()
    s = HDR
    s += f'; @launch kernel=k1_kernel grid=({K1_GRID},1,1) block=(512,1,1) lds={K1_LDS}\n'
    if not only_k1:
        s += f'; @launch kernel=k2_kernel grid=(256,1,1) block=(1024,1,1) lds={K2_LDS}\n'
    s += '.amdgcn_target "amdgcn-amd-amdhsa--gfx950"\n.text\n'
    k1.gen_k1(A)
    if not only_k1:
        k2.gen_k2(A)
    s += A.text()
    s += '.section .rodata,"a"\n.p2align 6\n'
    s += kd('k1_kernel', 128 if asm.STAMPS else 96, 96)
    if not only_k1:
        s += '.p2align 6\n' + kd('k2_kernel', 128, 102)
    open(path, 'w').write(s)

if __name__ == '__main__':
    import asm
    asm.STAMPS = '--stamps' in sys.argv
    asm.CYC = '--cyc' in sys.argv
    only = '--k1' in sys.argv
    out = [a for a in sys.argv[1:] if not a.startswith('--')]
    build(out[0] if out else 'standalone__mpnn_edge_mlp__graph.s', only)
```

```python
N = 50000
E = 800000
NB = 196
CHUNK = 3136
K1_GRID = 513
MAGIC196 = 85599
NLOG2E = 0xbfb8aa3b
NLN2 = 0xbf317218
WS_REC = 0
WS_SEG = 0x640000
WS_PT = 0x700000
WS_FRAG = 0xE00000
K1_CNT = 0
K1_OFF = 1024
K1_STAGE = 2048
K1_LDS = 8192 + 224*144
ROWB = 272
K2_CNT = 0
K2_OFF = 1024
K2_BINS = 2048
K2_GM = 2304
K2_MISC = 2560
K2_ORD = 2624
K2_Q = K2_ORD + 2048
K2_AGG = K2_Q + 200*ROWB
K2_REC = K2_AGG + 200*ROWB
K2_WB = K2_REC + 32768 + 128
K2_W3 = K2_WB + 8192
K2_LDS = K2_W3 + 128
K2_FR = K2_AGG + 224*144
assert K2_FR + 16384 <= K2_REC and K2_W3 == K2_WB + 8192
NGROUPS = 25
T1 = [0, 6, 2, 1, 7, 10, 4, 3, 9, 12, 5, 8, 15, 14, 11, 13]
T2 = [23, 24, 21, 20, 16, 22, 18, 19, 255, 17, 255, 255, 255, 255, 255, 255]
```

```python
from asm import *
import asm
from consts import *

def srd(A, d, base, nbytes_or_records, stride=0):
    A(f's_mov_b32 s{d}, s{base}')
    if stride:
        A(f's_and_b32 s{d+1}, s{base+1}, 0xffff')
        A(f's_or_b32 s{d+1}, s{d+1}, {stride<<16}')
    else:
        A(f's_and_b32 s{d+1}, s{base+1}, 0xffff')
    A(f's_mov_b32 s{d+2}, {nbytes_or_records}')
    A(f's_mov_b32 s{d+3}, 0x20000')

def scan64(A, v, tmp=None):
    for sh in (1, 2, 4, 8):
        A('s_nop 1')
        A(f'v_add_u32_dpp v{v}, v{v}, v{v} row_shr:{sh} row_mask:0xf bank_mask:0xf bound_ctrl:1')
    A('s_nop 1')
    A(f'v_add_u32_dpp v{v}, v{v}, v{v} row_bcast:15 row_mask:0xa bank_mask:0xf')
    A('s_nop 1')
    A(f'v_add_u32_dpp v{v}, v{v}, v{v} row_bcast:31 row_mask:0xc bank_mask:0xf')

import os
XNT = '' if 'x1plain' in os.environ.get('EXP','') else 'nt'
def gen_k1(A):
    A('''
.globl k1_kernel
.p2align 8
.type k1_kernel,@function
k1_kernel:
''')
    stamp(A,0)
    A('''
    s_cmp_ge_u32 s2, %d
    s_cbranch_scc1 K1_END
    s_load_dwordx4 s[4:7], s[0:1], 0      ; x, e_attr
    s_load_dwordx4 s[8:11], s[0:1], 16    ; src, dst
    s_load_dwordx4 s[12:15], s[0:1], 32   ; w_msg, w_upd
    s_load_dwordx2 s[16:17], s[0:1], 64   ; ws
    s_cmp_ge_u32 s2, 256
    s_cbranch_scc1 K1_NOTBIN
''' % K1_GRID)
    A(f'''
    v_lshlrev_b32 v1, 2, v0               ; 4t
    s_mul_i32 s3, s2, {CHUNK}
    v_add_u32 v2, s3, v1
    v_and_b32 v3, 255, v0
    v_lshlrev_b32 v3, 2, v3
    v_mov_b32 v4, 0
    ds_write_b32 v3, v4 offset:{K1_CNT}
    s_movk_i32 s18, {CHUNK//8}
    v_cmp_gt_u32 s[28:29], s18, v0
    v_cmp_gt_u32 vcc, {E}, v2
    s_and_b64 s[20:21], s[28:29], vcc     ; valid A
    v_add_u32 v3, {CHUNK//2}, v2
    v_cmp_gt_u32 vcc, {E}, v3
    s_and_b64 s[28:29], s[28:29], vcc     ; valid B
    v_lshlrev_b32 v5, 2, v2
    v_lshlrev_b32 v6, 1, v2
    v_add_u32 v44, {CHUNK//2*4}, v5
    v_add_u32 v45, {CHUNK//2*2}, v6
    s_waitcnt lgkmcnt(0)
    s_mov_b64 s[22:23], exec
    s_mov_b64 exec, s[20:21]
    global_load_dwordx4 v[8:11], v5, s[10:11] nt         ; dst A
    s_mov_b64 exec, s[28:29]
    global_load_dwordx4 v[12:15], v44, s[10:11] nt       ; dst B
    s_mov_b64 exec, s[20:21]
    global_load_dwordx4 v[16:19], v5, s[8:9] nt          ; src A
    global_load_dwordx2 v[24:25], v6, s[6:7] nt          ; e A
    s_mov_b64 exec, s[28:29]
    global_load_dwordx4 v[20:23], v44, s[8:9] nt         ; src B
    global_load_dwordx2 v[26:27], v45, s[6:7] nt         ; e B
    s_mov_b64 exec, s[22:23]
    s_barrier
    s_mov_b32 s18, {MAGIC196}
    s_mov_b32 s19, {-NB & 0xffffffff}
    s_mov_b32 s24, 0xffff0000
    v_mov_b32 v7, 1
''')
    stamp(A,1)
    A('s_waitcnt vmcnt(4)')
    stamp(A,2)
    for k in range(8):
        if k == 0:
            A('s_mov_b64 exec, s[20:21]')
        if k == 4:
            A('s_mov_b64 exec, s[28:29]')
        A(f'v_mul_u32_u24 v{28+k}, s18, v{8+k}')
        A(f'v_lshrrev_b32 v{28+k}, 24, v{28+k}')
        A(f'v_mad_i32_i24 v{8+k}, v{28+k}, s19, v{8+k}')
        A(f'v_lshlrev_b32 v{28+k}, 2, v{28+k}')
        A(f'ds_add_rtn_u32 v{36+k}, v{28+k}, v7 offset:{K1_CNT}')
    A('s_mov_b64 exec, s[22:23]')
    A('s_waitcnt vmcnt(0)')
    for k in range(8):
        ed = 24 + k//2
        if k % 2 == 0:
            A(f'v_lshl_or_b32 v{16+k}, v{ed}, 16, v{16+k}')
        else:
            A(f'v_and_or_b32 v{16+k}, v{ed}, s24, v{16+k}')
    A(f'''
    s_waitcnt lgkmcnt(0)
''')
    stamp(A,3)
    A(f'''
    s_barrier
    v_readfirstlane_b32 s25, v0
    s_cmp_ge_u32 s25, 64
    s_cbranch_scc1 K1_BIN_NOSCAN
    v_lshlrev_b32 v44, 4, v0
    ds_read_b128 v[48:51], v44 offset:{K1_CNT}
    s_waitcnt lgkmcnt(0)
    v_add_u32 v52, v48, v49               ; p2
    v_add_u32 v53, v52, v50               ; p3
    v_add_u32 v54, v53, v51               ; tot
    v_mov_b32 v55, v54
''')
    scan64(A, 55)
    A(f'''
    v_sub_u32 v56, v55, v54
    v_add_u32 v57, v56, v48
    v_add_u32 v58, v56, v52
    v_add_u32 v59, v56, v53
    ds_write_b128 v44, v[56:59] offset:{K1_OFF}
    v_lshl_or_b32 v48, v48, 16, v56
    v_lshl_or_b32 v49, v49, 16, v57
    v_lshl_or_b32 v50, v50, 16, v58
    v_lshl_or_b32 v51, v51, 16, v59
    s_lshl_b32 s26, s2, 10
    s_add_u32 s26, s26, {WS_SEG}
    v_add_u32 v45, s26, v44
    global_store_dwordx4 v45, v[48:51], s[16:17]
    s_waitcnt lgkmcnt(0)
K1_BIN_NOSCAN:
    s_barrier
''')
    for k in range(8):
        if k % 4 == 0:
            A('s_mov_b64 exec, s[%d:%d]' % ((20,21) if k == 0 else (28,29)))
        A(f'ds_read_b32 v{28+k}, v{28+k} offset:{K1_OFF}')
    A('s_mov_b64 exec, s[22:23]')
    A('s_waitcnt lgkmcnt(0)')
    for k in range(8):
        A(f'v_add_lshl_u32 v{28+k}, v{28+k}, v{36+k}, 3')
        A(f'v_mov_b32 v{44+2*k}, v{16+k}')
        A(f'v_lshlrev_b32 v{45+2*k}, 2, v{8+k}')
    for k in range(8):
        if k % 4 == 0:
            A('s_mov_b64 exec, s[%d:%d]' % ((20,21) if k == 0 else (28,29)))
        A(f'ds_write_b64 v{28+k}, v[{44+2*k}:{45+2*k}] offset:{K1_STAGE}')
    A(f'''
    s_mov_b64 exec, s[22:23]
    s_waitcnt lgkmcnt(0)
    s_barrier
''')
    stamp(A,4)
    A(f'''
    v_lshlrev_b32 v1, 4, v0                ; 16*t
    s_mul_i32 s26, s2, {CHUNK*8}
    s_add_u32 s26, s26, {WS_REC}
    v_add_u32 v2, s26, v1
    ds_read_b128 v[8:11], v1 offset:{K1_STAGE}
    ds_read_b128 v[12:15], v1 offset:{K1_STAGE+8192}
    ds_read_b128 v[16:19], v1 offset:{K1_STAGE+16384}
    v_cmp_gt_u32 vcc, 32, v0
    s_and_saveexec_b64 s[22:23], vcc
    s_cbranch_execz K1_BIN_SK4
    ds_read_b128 v[20:23], v1 offset:{K1_STAGE+24576}
    v_add_u32 v3, 24576, v2
    s_waitcnt lgkmcnt(0)
    global_store_dwordx4 v3, v[20:23], s[16:17]
K1_BIN_SK4:
    s_mov_b64 exec, s[22:23]
    v_add_u32 v3, 8192, v2
    v_add_u32 v4, 16384, v2
    s_waitcnt lgkmcnt(0)
    global_store_dwordx4 v2, v[8:11], s[16:17]
    global_store_dwordx4 v3, v[12:15], s[16:17]
    global_store_dwordx4 v4, v[16:19], s[16:17]
''')
    if asm.STAMPS:
        A('s_waitcnt vmcnt(0)')
    stamp(A,5)
    flush_stamps(A, 6, 16, 0)
    A('s_endpgm')
    A('''
K1_NOTBIN:
    s_cmp_ge_u32 s2, 512
    s_cbranch_scc1 K1_PREP
''')
    A(f"""
    v_lshlrev_b32 v1, 4, v0
    v_lshrrev_b32 v2, 6, v0
    s_sub_u32 s18, s2, 256
    v_readfirstlane_b32 s3, v2
    s_mul_i32 s18, s18, {NB}
    s_lshl_b32 s19, s18, 7                ; *128
    v_add_u32 v14, s19, v1
    v_lshrrev_b32 v15, 3, v0              ; row = t>>3
    v_mul_u32_u24 v15, 144, v15
    v_and_b32 v13, 7, v0
    v_lshl_add_u32 v15, v13, 4, v15
    s_waitcnt lgkmcnt(0)
    global_load_dwordx4 v[8:11], v1, s[12:13]
""")
    srd(A, 20, 4, N*128)
    A(f"""
    buffer_load_dwordx4 v[16:19], v14, s[20:23], 0 offen {XNT}
    v_add_u32 v12, 8192, v14
    buffer_load_dwordx4 v[20:23], v12, s[20:23], 0 offen {XNT}
    v_add_u32 v12, 16384, v14
    buffer_load_dwordx4 v[24:27], v12, s[20:23], 0 offen {XNT}
    v_add_u32 v12, 24576, v14
    v_cmp_gt_u32 s[30:31], 32, v0
    s_mov_b64 exec, s[30:31]
""")
    A(f"""
    buffer_load_dwordx4 v[28:31], v12, s[20:23], 0 offen {XNT}
    s_mov_b64 exec, -1
    s_add_u32 s24, s16, {WS_PT}
    s_addc_u32 s25, s17, 0
    s_and_b32 s25, s25, 0xffff
    s_mov_b32 s26, {N*128}
    s_mov_b32 s27, 0x20000
    s_lshl_b32 s19, s3, 5                 ; 32*wave
    v_and_b32 v3, 31, v0                  ; n
    v_add_u32 v4, s19, v3
    v_add_u32 v5, s18, v4
    v_bfe_u32 v6, v0, 5, 1                ; kh / h
    v_lshlrev_b32 v7, 7, v5               ; node*128
    s_waitcnt vmcnt(4)
    ds_write_b128 v1, v[8:11]
    s_waitcnt vmcnt(3)
    ds_write_b128 v15, v[16:19] offset:8192
    s_waitcnt vmcnt(2)
    ds_write_b128 v15, v[20:23] offset:{8192 + 64*144}
    s_waitcnt vmcnt(1)
    ds_write_b128 v15, v[24:27] offset:{8192 + 128*144}
    s_waitcnt vmcnt(0)
    s_mov_b64 exec, s[30:31]
    ds_write_b128 v15, v[28:31] offset:{8192 + 192*144}
    s_mov_b64 exec, -1
    s_waitcnt lgkmcnt(0)
    s_barrier
    s_cmp_ge_u32 s3, 7
    s_cbranch_scc1 K1_END
""")
    stamp(A,1)
    A(f"""
    s_mov_b32 s20, s19
    s_mov_b32 s21, s18
    v_mul_u32_u24 v12, 144, v4
    v_lshl_add_u32 v12, v6, 4, v12
    ds_read_b128 v[16:19], v12 offset:8192
    ds_read_b128 v[20:23], v12 offset:{8192+32}
    ds_read_b128 v[24:27], v12 offset:{8192+64}
    ds_read_b128 v[28:31], v12 offset:{8192+96}
""")
    def tr_addr(A, vd, vt1, vt2):
        A(f'''
    v_and_b32 v{vt1}, 63, v0
    v_bfe_u32 v{vd}, v{vt1}, 2, 2          ; r
    v_bfe_u32 v{vt2}, v{vt1}, 5, 1         ; kh
    v_lshl_add_u32 v{vd}, v{vt2}, 3, v{vd} ; 8kh + r
    v_lshlrev_b32 v{vd}, 7, v{vd}          ; *128 bytes
    v_and_b32 v{vt2}, 1, v{vt1}            ; c&1
    v_lshl_add_u32 v{vd}, v{vt2}, 6, v{vd} ; +32*2*(c&1)
    v_bfe_u32 v{vt2}, v{vt1}, 4, 1         ; G&1
    v_lshl_add_u32 v{vd}, v{vt2}, 4, v{vd} ; +4*2*2*(G&1)=16
    v_bfe_u32 v{vt2}, v{vt1}, 1, 1         ; c>>1
    v_lshl_add_u32 v{vd}, v{vt2}, 3, v{vd} ; +4*2*(c>>1)=8
''')
    tr_addr(A, 13, 14, 15)
    for t in range(2):
        for s in range(4):
            base = 32 + (t*4+s)*4
            for q in range(2):
                off = (16*s + 4*q)*128 + 16*t*2
                A(f'ds_read_b64_tr_b16 v[{base+2*q}:{base+2*q+1}], v13 offset:{off}')
    for i in range(32):
        A(f'v_mov_b32 v{64+i}, 0')
    A('s_waitcnt lgkmcnt(0)')
    stamp(A,2)
    for s in range(4):
        for t in range(2):
            base = 32 + (t*4+s)*4
            A(f'v_mfma_f32_32x32x16_bf16 v[{64+16*t}:{79+16*t}], v[{base}:{base+3}], v[{16+4*s}:{19+4*s}], v[{64+16*t}:{79+16*t}]')
    A('s_nop 15')
    A(f's_mov_b32 s18, {NLOG2E}')
    A('s_mov_b32 s19, 0x7fffffff')
    A('s_mov_b32 s28, 0xffff0000')
    A('s_mov_b32 s29, 0x8000')
    A('s_mov_b32 s30, 0x80000000')
    for i in range(32):
        A(f'v_mul_f32 v{64+i}, s18, v{64+i}')
    def near(dst16, T, L, tmp1, tmp2):
        A(f'v_and_b32 v{tmp1}, s19, v{T}')
        A(f'v_add_u32 v{tmp1}, s29, v{tmp1}')
        A(f'v_sub_u32_e64 v{tmp1}, v{tmp1}, v{L} clamp')
        A(f'v_and_or_b32 v{tmp1}, v{tmp1}, s28, v{L}')
        A(f'v_and_or_b32 v{dst16}, v{T}, s30, v{tmp1}')
    for t in range(2):
        for cc in range(2):
            o = 32 + (t*2+cc)*4
            for pr in range(2):
                b0, b1 = 2*pr, 2*pr+1
                hi0, lo0 = 64+16*t+8*cc+b0, 64+16*t+8*cc+4+b0
                hi1, lo1 = 64+16*t+8*cc+b1, 64+16*t+8*cc+4+b1
                A(f'v_cvt_pk_bf16_f32 v48, v{lo0}, v{lo0}')
                A('v_and_b32 v48, 0xffff, v48')
                near(o+b0, hi0, 48, 49, 50)
                A(f'v_lshrrev_b32 v51, 16, v{o+b0}')
                near(52, lo1, 51, 49, 50)
                A('v_lshrrev_b32 v52, 16, v52')
                near(o+b1, hi1, 52, 49, 50)
    A(f"""
    v_mul_u32_u24 v12, 144, v4
    v_lshl_add_u32 v12, v6, 6, v12
    ds_write_b128 v12, v[32:35] offset:8192
    ds_write_b128 v12, v[36:39] offset:{8192+16}
    ds_write_b128 v12, v[40:43] offset:{8192+32}
    ds_write_b128 v12, v[44:47] offset:{8192+48}
    v_and_b32 v3, 63, v0
    v_lshrrev_b32 v13, 3, v3               ; row in group of 8
    v_add_u32 v13, s19k, v13               ; + 32*wave -> local row
    v_and_b32 v14, 7, v0                   ; chunk
    v_mul_u32_u24 v15, 144, v13
    v_lshl_add_u32 v15, v14, 4, v15        ; lds addr
    v_add_u32 v12, s18k, v13               ; global node
    v_lshlrev_b32 v12, 7, v12
    v_lshl_add_u32 v12, v14, 4, v12        ; global byte offset
    s_waitcnt lgkmcnt(0)
    ds_read_b128 v[48:51], v15 offset:8192
    ds_read_b128 v[52:55], v15 offset:{8192+8*144}
    ds_read_b128 v[56:59], v15 offset:{8192+16*144}
    ds_read_b128 v[60:63], v15 offset:{8192+24*144}
    s_movk_i32 s28, {NB}
""".replace('s19k', 's20').replace('s18k', 's21'))
    for k in range(4):
        A(f"""
    v_add_u32 v16, {8*k}, v13
    v_cmp_gt_u32 vcc, s28, v16
    s_and_saveexec_b64 s[30:31], vcc
    s_waitcnt lgkmcnt({3-k})
    buffer_store_dwordx4 v[{48+4*k}:{51+4*k}], v12, s[24:27], 0 offen offset:{1024*k}
    s_mov_b64 exec, s[30:31]
""")
    stamp(A,3)
    if asm.STAMPS:
        A('s_waitcnt vmcnt(0)')
    stamp(A,4)
    stamp(A,5)
    flush_stamps(A, 6, 16, 0)
    A('s_endpgm')
    A(f'''
K1_PREP:
    v_lshlrev_b32 v1, 4, v0
    v_lshrrev_b32 v2, 6, v0
    s_nop 0
    v_readfirstlane_b32 s3, v2
    s_waitcnt lgkmcnt(0)
    v_add_u32 v2, 8192, v1
    global_load_dwordx4 v[8:11], v2, s[12:13]      ; W2 rows 64..127
    global_load_dwordx4 v[12:15], v1, s[14:15]
    global_load_dwordx4 v[16:19], v2, s[14:15]
    s_waitcnt vmcnt(0)
    ds_write_b128 v1, v[8:11]
    ds_write_b128 v1, v[12:15] offset:8192
    ds_write_b128 v1, v[16:19] offset:16384
    s_waitcnt lgkmcnt(0)
    s_barrier
''')
    tr_addr(A, 13, 14, 15)
    A(f"""
    v_and_b32 v14, 63, v0
    v_bfe_u32 v12, v14, 2, 2               ; r
    v_bfe_u32 v15, v14, 5, 1               ; kh
    v_lshl_add_u32 v12, v15, 3, v12        ; 8kh + r
    v_lshlrev_b32 v12, 7, v12
    v_and_b32 v15, 1, v14                  ; c&1
    v_lshl_add_u32 v12, v15, 5, v12        ; +16*2*(c&1)
    v_bfe_u32 v15, v14, 4, 1               ; G&1
    v_lshl_add_u32 v12, v15, 4, v12        ; +8*2*(G&1)
    v_bfe_u32 v15, v14, 1, 1               ; c>>1
    v_lshl_add_u32 v12, v15, 3, v12        ; +4*2*(c>>1)
    v_and_b32 v1, 63, v0
    v_lshlrev_b32 v1, 4, v1               ; lane*16
""")
    A(f"""
    s_lshr_b32 s21, s3, 2                  ; t
    s_and_b32 s20, s3, 3                   ; s
    s_lshl_b32 s20, s20, 11                ; 16*s*128
    s_lshl_b32 s22, s21, 5
    s_add_u32 s22, s22, s20
    v_add_u32 v14, s22, v13
    ds_read_b64_tr_b16 v[16:17], v14
    ds_read_b64_tr_b16 v[18:19], v14 offset:512
    s_lshl_b32 s22, s21, 6
    s_add_u32 s22, s22, s20
    s_add_u32 s22, s22, 8192
    v_add_u32 v14, s22, v12
    ds_read_b64_tr_b16 v[20:21], v14
    ds_read_b64_tr_b16 v[22:23], v14 offset:512
    ds_read_b64_tr_b16 v[24:25], v14 offset:8192
    ds_read_b64_tr_b16 v[26:27], v14 offset:{8192+512}
    s_lshl_b32 s19, s3, 10
    s_add_u32 s19, s19, {WS_FRAG}
    v_add_u32 v15, s19, v1
    s_waitcnt lgkmcnt(4)
    global_store_dwordx4 v15, v[16:19], s[16:17]
    v_add_u32 v15, 8192, v15
    s_waitcnt lgkmcnt(2)
    global_store_dwordx4 v15, v[20:23], s[16:17]
    v_add_u32 v15, 8192, v15
    s_waitcnt lgkmcnt(0)
    global_store_dwordx4 v15, v[24:27], s[16:17]
""")
    A('''
K1_END:
    s_endpgm
''')
```

```python
from asm import *
import asm
from consts import *
from k1 import srd, scan64

S_B = 2
S_WAVE = 3
S_X = 4
S_WM = 6
S_OUT = 8
S_WS = 10
SRD_X = 12
SRD_PT = 16
SRD_PTR = 20
SRD_OUT = 24
S_PASS = 28
S_J = 29
S_MAX = 30
S_PF = 31
S_MORE = 32
S_G = 33
S_NB0 = 34
S_MIN = 35
S_LN2 = 36
S_CLS = 38
S_G2 = 39
S_T0 = 40
SRD_WS = 44
S_MSK = 48
S_BK = 84
S_SO = 85
S_NREC = 93
S_FIRST = 96
S_NX = 97
S_TG1 = 98
S_TG2 = 99
S_MX = 90+4
S_C544 = 35
V_U0 = 8
V_S = 32; V_N = 64; V_D = 72; V_Q = 80; V_W = 88; V_U = 96; V_X = 104
V_P0 = 112; V_P1 = 114; V_E = 116; V_A = 118; V_DEG = 119; V_ROW = 120; V_C16 = 121
import os
EXP = os.environ.get('EXP','')
XNT = '' if 'x2plain' in EXP else 'nt'

def pack8(lst):
    v = 0
    for i, x in enumerate(lst):
        v |= (x & 0xff) << (8*i)
    return v & 0xffffffff, v >> 32

def gen_k2(A):
    A("""
.globl k2_kernel
.p2align 8
.type k2_kernel,@function
k2_kernel:
""")
    stamp(A, 0)
    lo1, hi1 = pack8(T1[:8]); lo2, hi2 = pack8(T1[8:])
    lo3, hi3 = pack8(T2[:8]); lo4, hi4 = pack8(T2[8:])
    A(f"""
    s_cmp_ge_u32 s2, 256
    s_cbranch_scc1 K2_END
    s_load_dwordx2 s[4:5], s[0:1], 0
    s_load_dwordx2 s[6:7], s[0:1], 32
    s_load_dwordx2 s[8:9], s[0:1], 48
    s_load_dwordx2 s[10:11], s[0:1], 64
    s_and_b32 s{S_BK}, s2, 7
    s_lshl_b32 s{S_BK}, s{S_BK}, 5
    s_lshr_b32 s{S_T0}, s2, 3
    s_add_u32 s{S_BK}, s{S_BK}, s{S_T0}
    v_lshrrev_b32 v1, 6, v0
    s_mul_i32 s{S_NB0}, s{S_BK}, {NB}
    v_readfirstlane_b32 s{S_WAVE}, v1
    s_mov_b32 s{S_PASS}, 0
    s_lshl_b32 s{S_T0}, s{S_BK}, 2
    s_add_u32 s{S_SO}, s{S_T0}, {WS_SEG}
    s_add_u32 s{S_SO+1}, s{S_SO}, 0x20000
    v_lshrrev_b32 v29, 3, v0                 ; s = t>>3 (0..127)
    v_lshlrev_b32 v2, 10, v29
    v_and_b32 v28, 7, v0                     ; i
    v_mul_u32_u24 v30, {CHUNK*8}, v29        ; s*25088
    v_lshl_add_u32 v30, v28, 4, v30          ; base0 = s*25088 + i*16
    v_lshlrev_b32 v{V_C16}, 4, v28           ; c*16
    v_lshlrev_b32 v28, 1, v28                ; 2i
    s_waitcnt lgkmcnt(0)
    s_mov_b32 s{SRD_WS}, s{S_WS}
    s_and_b32 s{SRD_WS+1}, s{S_WS+1}, 0xffff
    s_mov_b32 s{SRD_WS+2}, {WS_SEG + 256*1024}
    s_mov_b32 s{SRD_WS+3}, 0x20000
    buffer_load_dword v4, v2, s[{SRD_WS}:{SRD_WS+3}], s{S_SO} offen
    buffer_load_dword v5, v2, s[{SRD_WS}:{SRD_WS+3}], s{S_SO+1} offen
    s_mov_b32 s{S_LN2}, {NLN2}
    s_mov_b32 s{S_LN2+1}, {NLN2}
    s_movk_i32 s{S_CLS}, 0x207
    s_mov_b32 s{S_SO+4}, {WS_REC}
    s_mov_b32 s{S_SO+5}, {WS_REC + 128*CHUNK*8}
""")
    srd(A, SRD_X, S_X, N*128)
    srd(A, SRD_OUT, S_OUT, N*128)
    A(f"""
    s_add_u32 s{SRD_PT}, s{S_WS}, {WS_PT}
    s_addc_u32 s{SRD_PT+1}, s{S_WS+1}, 0
    s_and_b32 s{SRD_PT+1}, s{SRD_PT+1}, 0xffff
    s_mov_b32 s{SRD_PTR}, s{SRD_PT}
    s_mov_b32 s{SRD_PTR+1}, s{SRD_PT+1}
    s_or_b32 s{SRD_PT+1}, s{SRD_PT+1}, {128<<16}
    s_mov_b32 s{SRD_PT+2}, {N}
    s_mov_b32 s{SRD_PT+3}, 0x20000
    s_mov_b32 s{SRD_PTR+2}, {N*128}
    s_mov_b32 s{SRD_PTR+3}, 0x20000
    s_mov_b32 s{S_NREC}, {N}
    s_cmp_lt_u32 s{S_WAVE}, 8
    s_mov_b32 s{S_T0}, {lo2:#x}
    s_cmov_b32 s{S_T0}, {lo1:#x}
    s_mov_b32 s{S_T0+1}, {hi2:#x}
    s_cmov_b32 s{S_T0+1}, {hi1:#x}
    s_mov_b32 s{S_T0+2}, {lo4:#x}
    s_cmov_b32 s{S_T0+2}, {lo3:#x}
    s_mov_b32 s{S_T0+3}, {hi4:#x}
    s_cmov_b32 s{S_T0+3}, {hi3:#x}
    s_and_b32 s{S_TG1}, s{S_WAVE}, 7
    s_lshl_b32 s{S_TG1}, s{S_TG1}, 3
    s_lshr_b64 s[{S_T0}:{S_T0+1}], s[{S_T0}:{S_T0+1}], s{S_TG1}
    s_lshr_b64 s[{S_T0+2}:{S_T0+3}], s[{S_T0+2}:{S_T0+3}], s{S_TG1}
    s_and_b32 s{S_TG1}, s{S_T0}, 0xff
    s_and_b32 s{S_TG2}, s{S_T0+2}, 0xff
    v_mov_b32 v{V_P0+1}, v{V_C16}
    v_mov_b32 v{V_P1+1}, v{V_C16}
    v_mov_b32 v{V_E}, 0
    v_mov_b32 v{V_E+1}, 0
""")
    if 'nogather' in EXP:
        A(f's_mov_b32 s{S_NREC}, 0')
        A(f's_mov_b32 s{SRD_PTR+2}, 0')
    A(f"""
    s_branch K2_PASS0
K2_PASS:
    buffer_load_dword v4, v2, s[{SRD_WS}:{SRD_WS+3}], s{S_SO} offen
    buffer_load_dword v5, v2, s[{SRD_WS}:{SRD_WS+3}], s{S_SO+1} offen
K2_PASS0:
    s_mov_b32 s{S_G}, s{S_TG1}
    s_mov_b32 s{S_G2}, s{S_TG2}
    s_mov_b32 s{S_FIRST}, s{S_PASS}
    v_mov_b32 v3, 0
    v_lshlrev_b32 v1, 2, v0
    v_cmp_gt_u32 vcc, 256, v0
    s_and_saveexec_b64 s[{S_T0+2}:{S_T0+3}], vcc
    ds_write_b32 v1, v3 offset:{K2_CNT}
    v_cmp_gt_u32 vcc, 144, v0
    s_and_b64 exec, exec, vcc
    ds_write_b32 v1, v3 offset:{K2_BINS}
    s_mov_b64 exec, s[{S_T0+2}:{S_T0+3}]
    s_lshl_b32 s{S_T0}, s{S_PASS}, 5
    v_add_u32 v31, s{S_T0}, v28              ; slot0 = 2i + 32p
    s_lshl_b32 s{S_T0}, s{S_PASS}, 8
    v_add_u32 v1, s{S_T0}, v30               ; base0 + 256p
    v_add_u32 v2, 1, v31
    v_add_u32 v3, 16, v31
    v_add_u32 v6, 17, v31
    v_add_u32 v7, 32, v31
    s_waitcnt lgkmcnt(0)
    s_barrier
    s_waitcnt vmcnt(0)
""")
    stamp(A, 1)
    for rho in range(2):
        m0 = S_MSK + 8*rho
        R = 96 + 8*rho
        A(f"""
    v_mad_u32_u16 v{R}, v{4+rho}, 8, v1
    v_cmp_lt_u32_sdwa s[{m0}:{m0+1}], v31, v{4+rho} src0_sel:DWORD src1_sel:WORD_1
    v_cmp_lt_u32_sdwa s[{m0+4}:{m0+5}], v3, v{4+rho} src0_sel:DWORD src1_sel:WORD_1
    v_cmp_lt_u32_sdwa s[{m0+2}:{m0+3}], v2, v{4+rho} src0_sel:DWORD src1_sel:WORD_1
    v_cmp_lt_u32_sdwa s[{m0+6}:{m0+7}], v6, v{4+rho} src0_sel:DWORD src1_sel:WORD_1
    v_cmp_lt_u32_sdwa vcc, v7, v{4+rho} src0_sel:DWORD src1_sel:WORD_1
    s_mov_b64 exec, s[{m0}:{m0+1}]
    buffer_load_dwordx4 v[{R}:{R+3}], v{R}, s[{SRD_WS}:{SRD_WS+3}], s{S_SO+4+rho} offen
    v_add_u32 v{R+4}, 128, v{R}
    s_mov_b64 exec, s[{m0+4}:{m0+5}]
    buffer_load_dwordx4 v[{R+4}:{R+7}], v{R+4}, s[{SRD_WS}:{SRD_WS+3}], s{S_SO+4+rho} offen
    s_mov_b64 exec, -1
""".replace(f"""    buffer_load_dwordx4 v[{R}:{R+3}], v{R}, s[{SRD_WS}:{SRD_WS+3}], s{S_SO+4+rho} offen
    v_add_u32 v{R+4}, 128, v{R}
    s_mov_b64 exec, s[{m0+4}:{m0+5}]
    buffer_load_dwordx4 v[{R+4}:{R+7}], v{R+4}, s[{SRD_WS}:{SRD_WS+3}], s{S_SO+4+rho} offen
""", f"""    s_mov_b64 exec, s[{m0+4}:{m0+5}]
    buffer_load_dwordx4 v[{R+4}:{R+7}], v{R}, s[{SRD_WS}:{SRD_WS+3}], s{S_SO+4+rho} offen offset:128
    s_mov_b64 exec, s[{m0}:{m0+1}]
    buffer_load_dwordx4 v[{R}:{R+3}], v{R}, s[{SRD_WS}:{SRD_WS+3}], s{S_SO+4+rho} offen
"""))
        if rho == 0:
            A(f's_mov_b64 s[{S_T0}:{S_T0+1}], vcc')
        else:
            A(f's_or_b64 s[{S_T0}:{S_T0+1}], s[{S_T0}:{S_T0+1}], vcc')
    A(f"""
    s_cmp_eq_u64 s[{S_T0}:{S_T0+1}], 0
    s_cbranch_scc1 K2_NOMORE
    v_mov_b32 v1, {K2_MISC}
    v_mov_b32 v2, 1
    ds_write_b32 v1, v2
K2_NOMORE:
    s_cmp_lg_u32 s{S_PASS}, 0
    s_cbranch_scc1 K2_RW0
    s_barrier
    ; x chunk(s) -> v[48:51], v[52:55] ; frag F=wave -> v[56:59] ; Wbot frag / w3 -> v[60:63]
    s_lshl_b32 s{S_T0+2}, s{S_NB0}, 7
    v_lshlrev_b32 v2, 4, v0
    v_add_u32 v2, s{S_T0+2}, v2
    v_and_b32 v3, 63, v0
    v_lshlrev_b32 v3, 4, v3                  ; lane*16
    s_lshl_b32 s{S_T0+2}, s{S_WAVE}, 10
    s_add_u32 s{S_T0+3}, s{S_T0+2}, {WS_FRAG}
    v_add_u32 v1, s{S_T0+3}, v3
    global_load_dwordx4 v[56:59], v1, s[{S_WS}:{S_WS+1}]
    s_cmp_ge_u32 s{S_WAVE}, 9
    s_cbranch_scc1 K2_XL9
    s_cmp_eq_u32 s{S_WAVE}, 8
    s_cbranch_scc1 K2_XL8
    v_add_u32 v1, 16384, v1
    global_load_dwordx4 v[60:63], v1, s[{S_WS}:{S_WS+1}]
    s_branch K2_XL7
K2_XL8:
    s_mov_b64 exec, 0xff
    v_add_u32 v1, {128*128}, v3
    global_load_dwordx4 v[60:63], v1, s[{S_WM}:{S_WM+1}]
    s_mov_b64 exec, -1
K2_XL7:
    buffer_load_dwordx4 v[48:51], v2, s[{SRD_X}:{SRD_X+3}], 0 offen {XNT}
    v_add_u32 v2, 16384, v2
    s_movk_i32 s{S_T0+2}, 544
    v_cmp_gt_u32 s[{S_MX}:{S_MX+1}], s{S_T0+2}, v0
    s_mov_b64 exec, s[{S_MX}:{S_MX+1}]
    buffer_load_dwordx4 v[52:55], v2, s[{SRD_X}:{SRD_X+3}], 0 offen {XNT}
    s_mov_b64 exec, -1
    v_mov_b32 v1, 4
    s_waitcnt vmcnt(4)
    s_branch K2_RECOK
K2_XL9:
    buffer_load_dwordx4 v[48:51], v2, s[{SRD_X}:{SRD_X+3}], 0 offen {XNT}
    v_mov_b32 v1, 4
    s_waitcnt vmcnt(2)
    s_branch K2_RECOK
K2_RW0:
    v_mov_b32 v1, 4
    s_waitcnt vmcnt(0)
K2_RECOK:
""")
    if 'alt' not in EXP: stamp(A, 3)
    for rho in range(2):
        for q in range(4):
            k = 4*rho + q
            rec = 96 + 8*rho + 2*q
            msk = S_MSK + 8*rho + 2*q
            A(f"""
    s_mov_b64 exec, s[{msk}:{msk+1}]
    ds_add_rtn_u32 v{24+k}, v{rec+1}, v1 offset:{K2_CNT}
""")
    A(f"""
    s_mov_b64 exec, -1
    s_waitcnt lgkmcnt(0)
    s_barrier
""")
    stamp(A, 4)
    A(f"""
    s_cmp_eq_u32 s{S_WAVE}, 14
    s_cbranch_scc0 K2_NOPFX
    v_and_b32 v2, 63, v0                     ; lane
    v_lshlrev_b32 v1, 4, v2
    ds_read_b128 v[64:67], v1 offset:{K2_CNT}
    s_waitcnt lgkmcnt(0)
    v_add_u32 v68, v64, v65
    v_add_u32 v69, v68, v66
    v_add_u32 v70, v69, v67
    v_mov_b32 v71, v70
""")
    scan64(A, 71)
    A(f"""
    v_sub_u32 v72, v71, v70
    v_add_u32 v72, {K2_REC}, v72
    v_add_u32 v73, v72, v64
    v_add_u32 v74, v72, v68
    v_add_u32 v75, v72, v69
    ds_write_b128 v1, v[72:75] offset:{K2_OFF}
    s_waitcnt lgkmcnt(0)
K2_NOPFX:
    s_barrier
""")
    if 'alt' not in EXP: stamp(A, 5)
    for rho in range(2):
        for q in range(4):
            rec = 96 + 8*rho + 2*q
            msk = S_MSK + 8*rho + 2*q
            A(f"""
    s_mov_b64 exec, s[{msk}:{msk+1}]
    ds_read_b32 v{rec+1}, v{rec+1} offset:{K2_OFF}
""")
    A(f"""
    s_mov_b64 exec, -1
    v_mov_b32 v1, {K2_MISC}
    ds_read_b32 v2, v1
    s_cmp_eq_u32 s{S_WAVE}, 15
    s_cbranch_scc0 K2_NOS1
    v_and_b32 v3, 63, v0
    v_lshlrev_b32 v1, 4, v3
    ds_read_b128 v[64:67], v1 offset:{K2_CNT}
    ds_read_b128 v[72:75], v1 offset:{K2_OFF}
K2_NOS1:
    s_waitcnt lgkmcnt(0)
    v_readfirstlane_b32 s{S_MORE}, v2
""")
    for rho in range(2):
        for q in range(4):
            k = 4*rho + q
            rec = 96 + 8*rho + 2*q
            msk = S_MSK + 8*rho + 2*q
            A(f"""
    s_mov_b64 exec, s[{msk}:{msk+1}]
    v_add_u32 v{rec+1}, v{rec+1}, v{24+k}
    ds_write_b32 v{rec+1}, v{rec}
""")
    A(f"""
    s_mov_b64 exec, -1
    s_cmp_eq_u32 s{S_WAVE}, 15
    s_cbranch_scc0 K2_SORTDONE
    v_and_b32 v2, 63, v0
    v_mov_b32 v3, 1
    v_mov_b32 v40, 63
""")
    for k in range(4):
        A(f"""
    v_lshrrev_b32 v{64+k}, 2, v{64+k}        ; deg
    v_min_u32 v{76+k}, 62, v{64+k}
    v_sub_u32 v{76+k}, 62, v{76+k}
    v_lshl_add_u32 v{32+2*k}, v2, 2, {k}     ; node
    v_cmp_lt_u32 vcc, {NB-1}, v{32+2*k}
    v_min_u32 v{32+2*k}, 199, v{32+2*k}
    v_mul_u32_u24 v{32+2*k}, {ROWB}, v{32+2*k}
    v_cndmask_b32 v{76+k}, v{76+k}, v40, vcc
    v_lshlrev_b32 v{76+k}, 2, v{76+k}
    ds_add_rtn_u32 v{80+k}, v{76+k}, v3 offset:{K2_BINS}
    v_lshl_or_b32 v{32+2*k}, v{64+k}, 16, v{32+2*k}
    v_mov_b32 v{33+2*k}, v{72+k}
""")
    A(f"""
    v_lshlrev_b32 v4, 2, v2
    s_waitcnt lgkmcnt(0)
    ds_read_b32 v5, v4 offset:{K2_BINS}
    s_waitcnt lgkmcnt(0)
    v_mov_b32 v6, v5
""")
    scan64(A, 6)
    A(f"""
    v_sub_u32 v6, v6, v5
    ds_write_b32 v4, v6 offset:{K2_BINS}
    s_waitcnt lgkmcnt(0)
""")
    for k in range(4):
        A(f'ds_read_b32 v{76+k}, v{76+k} offset:{K2_BINS}')
    A('s_waitcnt lgkmcnt(0)')
    for k in range(4):
        A(f"""
    v_add_u32 v{76+k}, v{76+k}, v{80+k}      ; pos
    v_lshlrev_b32 v{80+k}, 3, v{76+k}
    ds_write_b64 v{80+k}, v[{32+2*k}:{33+2*k}] offset:{K2_ORD}
    v_and_b32 v{80+k}, 0x7f8, v{76+k}        ; (pos>>3)*8
    ds_max_u32 v{80+k}, v{64+k} offset:{K2_GM}
    v_sub_u32 v{64+k}, 0xffff, v{64+k}
    ds_max_u32 v{80+k}, v{64+k} offset:{K2_GM+4}
""")
    A(f"""
K2_SORTDONE:
    s_waitcnt lgkmcnt(0)
    s_barrier
""")
    stamp(A, 6)
    A(f"""
K2_GROUP:
    v_bfe_u32 v1, v0, 3, 3
    s_lshl_b32 s{S_T0}, s{S_G}, 3
    v_add_lshl_u32 v1, s{S_T0}, v1, 3        ; (8g+slot)*8
    v_mov_b32 v2, s{S_T0}                    ; g*8
    ds_read_b64 v[{V_X}:{V_X+1}], v1 offset:{K2_ORD}
    ds_read_b64 v[{V_X+2}:{V_X+3}], v2 offset:{K2_GM}
    s_waitcnt lgkmcnt(0)
    v_mov_b32 v{V_A}, v{V_X+1}
    v_lshrrev_b32 v{V_DEG}, 16, v{V_X}
    v_and_b32 v{V_X}, 0xffff, v{V_X}
    v_add_u32 v{V_ROW}, v{V_X}, v{V_C16}
    v_readfirstlane_b32 s{S_MAX}, v{V_X+2}
    v_readfirstlane_b32 s{S_MIN}, v{V_X+3}
    s_cmp_eq_u32 s{S_FIRST}, 0
    s_cbranch_scc1 K2_FIRSTG
""")
    for j in range(8):
        A(f'ds_read_u16 v{V_U+j}, v{V_A} offset:{4*j}')
    A(f"""
    ds_read_u16 v{V_P0}, v{V_A} offset:32
    ds_read_u16_d16_hi v{V_E}, v{V_A} offset:2
    ds_read_b128 v[{V_Q}:{V_Q+3}], v{V_ROW} offset:{K2_Q}
    ds_read_b128 v[{V_Q+4}:{V_Q+7}], v{V_ROW} offset:{K2_Q+128}
    s_waitcnt lgkmcnt(4)
""")
    for j in range(8):
        A(f'v_lshl_add_u32 v{V_U+j}, v{V_U+j}, 7, v{V_C16}')
        A(f'buffer_load_dwordx4 v[{V_S+4*j}:{V_S+4*j+3}], v{V_U+j}, s[{SRD_PTR}:{SRD_PTR+3}], 0 offen')
    A('s_branch K2_GO')
    A('K2_FIRSTG:')
    for j in range(4):
        A(f'ds_read_u16 v{V_U+j}, v{V_A} offset:{4*j}')
    A(f"""
    s_mov_b32 s{S_FIRST}, 1
    v_and_b32 v3, 63, v0
    v_lshlrev_b32 v3, 4, v3
    s_lshl_b32 s{S_T0+2}, s{S_WAVE}, 10
    s_add_u32 s{S_T0+3}, s{S_T0+2}, {K2_FR}
    v_add_u32 v1, s{S_T0+3}, v3
    v_lshrrev_b32 v2, 3, v0
    v_mul_u32_u24 v2, 144, v2
    v_add_u32 v2, v2, v{V_C16}
    v_add_u32 v2, {K2_AGG}, v2
    s_waitcnt lgkmcnt(0)
""")
    for j in range(4):
        A(f'v_lshl_add_u32 v{V_U+j}, v{V_U+j}, 7, v{V_C16}')
        A(f'buffer_load_dwordx4 v[{V_S+4*j}:{V_S+4*j+3}], v{V_U+j}, s[{SRD_PTR}:{SRD_PTR+3}], 0 offen')
    A('s_waitcnt vmcnt(4)')
    if 'alt' in EXP: stamp(A, 3)
    A(f"""
    ds_write_b128 v2, v[48:51]
    ds_write_b128 v1, v[56:59]
    s_cmp_ge_u32 s{S_WAVE}, 9
    s_cbranch_scc1 K2_STG9
    s_mov_b64 exec, s[{S_MX}:{S_MX+1}]
    ds_write_b128 v2, v[52:55] offset:{128*144}
    s_mov_b64 exec, -1
    s_add_u32 s{S_T0+3}, s{S_T0+2}, {K2_WB}
    v_add_u32 v1, s{S_T0+3}, v3
    s_cmp_eq_u32 s{S_WAVE}, 8
    s_cselect_b64 exec, 0xff, -1
    ds_write_b128 v1, v[60:63]
    s_mov_b64 exec, -1
K2_STG9:
    s_waitcnt lgkmcnt(0)
    s_barrier
""")
    if 'alt' in EXP: stamp(A, 5)
    A(f"""
    v_add_u32 v1, {K2_W3}, v{V_C16}
    ds_read_b128 v[124:127], v1
    s_cmp_ge_u32 s{S_WAVE}, 14
    s_cbranch_scc1 K2_QDONE
    s_lshr_b32 s{S_T0}, s{S_WAVE}, 1
    s_lshl_b32 s{S_T0}, s{S_T0}, 5          ; 32*tile
    v_and_b32 v122, 31, v0
    v_add_u32 v122, s{S_T0}, v122           ; nloc
    v_bfe_u32 v123, v0, 5, 1                ; kh
    v_mul_u32_u24 v1, 144, v122
    v_lshl_add_u32 v1, v123, 4, v1
    v_add_u32 v1, {K2_AGG}, v1
    s_and_b32 s{S_T0+1}, s{S_WAVE}, 1       ; t
    s_lshl_b32 s{S_T0+2}, s{S_T0+1}, 12     ; t*4096
    s_add_u32 s{S_T0+2}, s{S_T0+2}, {K2_FR}
    v_add_u32 v2, s{S_T0+2}, v3
""")
    for s_ in range(4):
        A(f'ds_read_b128 v[{96+4*s_}:{99+4*s_}], v1 offset:{32*s_}')
        A(f'ds_read_b128 v[{64+4*s_}:{67+4*s_}], v2 offset:{1024*s_}')
    for s_ in range(4):
        A(f'ds_read_b128 v[{48+4*s_}:{51+4*s_}], v2 offset:{8192+1024*s_}')
    for s_ in range(4):
        cq = '0' if s_ == 0 else 'v[80:95]'
        A(f's_waitcnt lgkmcnt({10-2*s_})')
        A(f'v_mfma_f32_32x32x16_bf16 v[80:95], v[{64+4*s_}:{67+4*s_}], v[{96+4*s_}:{99+4*s_}], {cq}')
    for s_ in range(4):
        cu = '0' if s_ == 0 else f'v[{V_U0}:{V_U0+15}]'
        A(f's_waitcnt lgkmcnt({3-s_})')
        A(f'v_mfma_f32_32x32x16_bf16 v[{V_U0}:{V_U0+15}], v[{48+4*s_}:{51+4*s_}], v[{96+4*s_}:{99+4*s_}], {cu}')
    A(f"""
    s_lshl_b32 s{S_T0+1}, s{S_T0+1}, 5      ; 2t*16
    v_mul_u32_u24 v1, {ROWB}, v122          ; nloc*272
    v_lshl_add_u32 v1, v123, 6, v1          ; + 4h*16
    v_add_u32 v1, s{S_T0+1}, v1
    s_mov_b32 s{S_T0+2}, {NLOG2E}
    s_mov_b32 s{S_T0+3}, {NLOG2E}
    v_cmp_gt_u32 vcc, 200, v122
""")
    for k in range(8):
        A(f'v_pk_mul_f32 v[{80+2*k}:{81+2*k}], v[{80+2*k}:{81+2*k}], s[{S_T0+2}:{S_T0+3}]')
    A(f's_and_saveexec_b64 s[{S_T0}:{S_T0+1}], vcc')
    for a_ in range(4):
        off = (a_ & 1)*128 + (a_ >> 1)*16 + K2_Q
        A(f'ds_write_b128 v1, v[{80+4*a_}:{83+4*a_}] offset:{off}')
    A(f"""
    s_mov_b64 exec, s[{S_T0}:{S_T0+1}]
K2_QDONE:
    s_mov_b32 s{S_T0+2}, {NLOG2E}
    s_mov_b32 s{S_T0+3}, 0xffff0000
    s_waitcnt lgkmcnt(0)
""")
    for k in range(4):
        A(f'v_lshlrev_b32 v{V_W+2*k}, 16, v{124+k}')
        A(f'v_and_b32 v{V_W+2*k+1}, s{S_T0+3}, v{124+k}')
    for r in range(8):
        A(f'v_mul_f32 v{V_W+r}, s{S_T0+2}, v{V_W+r}')
    for j in range(4, 8):
        A(f'ds_read_u16 v{V_U+j}, v{V_A} offset:{4*j}')
    A(f"""
    ds_read_u16 v{V_P0}, v{V_A} offset:32
    ds_read_u16_d16_hi v{V_E}, v{V_A} offset:2
    s_barrier                                ; D2: Q ready
""")
    stamp(A, 2)
    A(f"""
    ds_read_b128 v[{V_Q}:{V_Q+3}], v{V_ROW} offset:{K2_Q}
    ds_read_b128 v[{V_Q+4}:{V_Q+7}], v{V_ROW} offset:{K2_Q+128}
    s_waitcnt lgkmcnt(4)
""")
    for j in range(4, 8):
        A(f'v_lshl_add_u32 v{V_U+j}, v{V_U+j}, 7, v{V_C16}')
        A(f'buffer_load_dwordx4 v[{V_S+4*j}:{V_S+4*j+3}], v{V_U+j}, s[{SRD_PTR}:{SRD_PTR+3}], 0 offen')
    A(f"""
K2_GO:
    s_sub_u32 s{S_MIN}, 0xffff, s{S_MIN}
    s_sub_i32 s{S_PF}, s{S_MAX}, 8
    s_mov_b32 s{S_J}, 0
""")
    A(f"""
    s_cmp_eq_u32 s{S_MIN}, 0
    s_cbranch_scc1 K2_INIT0
    s_waitcnt vmcnt(7) lgkmcnt(0)
    v_lshlrev_b64 v[{V_X}:{V_X+1}], 16, v[{V_S}:{V_S+1}]
    v_lshlrev_b64 v[{V_X+2}:{V_X+3}], 16, v[{V_S+2}:{V_S+3}]
    v_pk_fma_f32 v[{V_N}:{V_N+1}], v[{V_E}:{V_E+1}], v[{V_W}:{V_W+1}], v[{V_S}:{V_S+1}] op_sel:[0,0,0] op_sel_hi:[0,1,1]
    v_pk_fma_f32 v[{V_N+2}:{V_N+3}], v[{V_E}:{V_E+1}], v[{V_W+2}:{V_W+3}], v[{V_S+2}:{V_S+3}] op_sel:[0,0,0] op_sel_hi:[0,1,1]
    v_pk_fma_f32 v[{V_N+4}:{V_N+5}], v[{V_E}:{V_E+1}], v[{V_W+4}:{V_W+5}], v[{V_X}:{V_X+1}] op_sel:[0,0,0] op_sel_hi:[0,1,1]
    v_pk_fma_f32 v[{V_N+6}:{V_N+7}], v[{V_E}:{V_E+1}], v[{V_W+6}:{V_W+7}], v[{V_X+2}:{V_X+3}] op_sel:[0,0,0] op_sel_hi:[0,1,1]
""")
    for k in range(4):
        A(f'v_pk_add_f32 v[{V_N+2*k}:{V_N+2*k+1}], v[{V_N+2*k}:{V_N+2*k+1}], v[{V_Q+2*k}:{V_Q+2*k+1}]')
    A(f"""
    v_exp_f32 v{V_X}, v{V_N}
    s_cmp_lt_i32 s{S_J}, s{S_PF}
    v_exp_f32 v{V_X+1}, v{V_N+1}
    s_cselect_b32 s{SRD_PT+2}, s{S_NREC}, 0
    v_exp_f32 v{V_X+2}, v{V_N+2}
    buffer_load_dwordx4 v[{V_S}:{V_S+3}], v[{V_P0}:{V_P0+1}], s[{SRD_PT}:{SRD_PT+3}], 0 idxen offen
    v_exp_f32 v{V_X+3}, v{V_N+3}
    ds_read_u16 v{V_P1}, v{V_A} offset:{4*9}
    v_exp_f32 v{V_X+4}, v{V_N+4}
    ds_read_u16_d16_hi v{V_E+1}, v{V_A} offset:{4*1+2}
    v_exp_f32 v{V_X+5}, v{V_N+5}
    s_mov_b32 s{S_J}, 1
    v_exp_f32 v{V_X+6}, v{V_N+6}
    s_cmp_eq_u32 s{S_MAX}, 1
    v_exp_f32 v{V_X+7}, v{V_N+7}
""")
    for k in range(4):
        A(f'v_pk_add_f32 v[{V_D+2*k}:{V_D+2*k+1}], v[{V_X+2*k}:{V_X+2*k+1}], 1.0 op_sel_hi:[1,0]')
    A(f"""
    s_cbranch_scc1 K2_CLOSE
    s_branch K2_STEP1
K2_INIT0:
""")
    for i in range(8):
        A(f'v_mov_b32 v{V_N+i}, 0')
        A(f'v_mov_b32 v{V_D+i}, 1.0')
    A(f"""
    s_cmp_eq_u32 s{S_MAX}, 0
    s_cbranch_scc1 K2_CLOSE
""")
    A('K2_LOOP:')
    for rho in range(8):
        S = V_S + 4*rho
        P = V_P0 if rho % 2 == 0 else V_P1
        Pn = V_P1 if rho % 2 == 0 else V_P0
        sel = rho & 1
        if rho == 1:
            A('K2_STEP1:')
        A(f"""
    s_waitcnt vmcnt(7) lgkmcnt(0)
    v_lshlrev_b64 v[{V_X}:{V_X+1}], 16, v[{S}:{S+1}]
    v_lshlrev_b64 v[{V_X+2}:{V_X+3}], 16, v[{S+2}:{S+3}]
    v_pk_fma_f32 v[{V_U}:{V_U+1}], v[{V_E}:{V_E+1}], v[{V_W}:{V_W+1}], v[{S}:{S+1}] op_sel:[{sel},0,0] op_sel_hi:[{sel},1,1]
    v_pk_fma_f32 v[{V_U+2}:{V_U+3}], v[{V_E}:{V_E+1}], v[{V_W+2}:{V_W+3}], v[{S+2}:{S+3}] op_sel:[{sel},0,0] op_sel_hi:[{sel},1,1]
    v_pk_fma_f32 v[{V_U+4}:{V_U+5}], v[{V_E}:{V_E+1}], v[{V_W+4}:{V_W+5}], v[{V_X}:{V_X+1}] op_sel:[{sel},0,0] op_sel_hi:[{sel},1,1]
    v_pk_fma_f32 v[{V_U+6}:{V_U+7}], v[{V_E}:{V_E+1}], v[{V_W+6}:{V_W+7}], v[{V_X+2}:{V_X+3}] op_sel:[{sel},0,0] op_sel_hi:[{sel},1,1]
""")
        for k in range(4):
            A(f'v_pk_add_f32 v[{V_U+2*k}:{V_U+2*k+1}], v[{V_U+2*k}:{V_U+2*k+1}], v[{V_Q+2*k}:{V_Q+2*k+1}]')
        A(f"""
    v_exp_f32 v{V_X}, v{V_U}
    s_cmp_lt_i32 s{S_J}, s{S_PF}
    v_exp_f32 v{V_X+1}, v{V_U+1}
    s_cselect_b32 s{SRD_PT+2}, s{S_NREC}, 0
    v_exp_f32 v{V_X+2}, v{V_U+2}
    buffer_load_dwordx4 v[{S}:{S+3}], v[{P}:{P+1}], s[{SRD_PT}:{SRD_PT+3}], 0 idxen offen
    v_exp_f32 v{V_X+3}, v{V_U+3}
    ds_read_u16 v{Pn}, v{V_A} offset:{4*(rho+9)}
    v_exp_f32 v{V_X+4}, v{V_U+4}
    ds_read_u16_d16_hi v{V_E + ((rho+1)&1)}, v{V_A} offset:{4*(rho+1)+2}
    v_exp_f32 v{V_X+5}, v{V_U+5}
    s_cmp_ge_u32 s{S_J}, s{S_MIN}
    v_exp_f32 v{V_X+6}, v{V_U+6}
    s_cbranch_scc1 K2_MASK{rho}
K2_BACK{rho}:
    v_exp_f32 v{V_X+7}, v{V_U+7}
    s_add_u32 s{S_J}, s{S_J}, 1
""")
        for k in range(4):
            n, d, u, x = V_N+2*k, V_D+2*k, V_U+2*k, V_X+2*k
            A(f'v_pk_fma_f32 v[{n}:{n+1}], v[{n}:{n+1}], v[{x}:{x+1}], v[{n}:{n+1}]')
        for k in range(4):
            n, d, u, x = V_N+2*k, V_D+2*k, V_U+2*k, V_X+2*k
            A(f'v_pk_fma_f32 v[{n}:{n+1}], v[{u}:{u+1}], v[{d}:{d+1}], v[{n}:{n+1}]')
        A(f's_cmp_eq_u32 s{S_J}, s{S_MAX}')
        for k in range(4):
            n, d, u, x = V_N+2*k, V_D+2*k, V_U+2*k, V_X+2*k
            A(f'v_pk_fma_f32 v[{d}:{d+1}], v[{d}:{d+1}], v[{x}:{x+1}], v[{d}:{d+1}]')
        A(f"""
    s_mov_b64 exec, -1
    s_cbranch_scc1 K2_CLOSE
""")
    A(f"""
    v_add_u32 v{V_A}, 32, v{V_A}
    s_branch K2_LOOP
""")
    for rho in range(8):
        A(f"""
K2_MASK{rho}:
    v_cmp_lt_u32 vcc, s{S_J}, v{V_DEG}
    s_mov_b64 exec, vcc
    s_branch K2_BACK{rho}
""")
    A(f'''
K2_CLOSE:
    s_waitcnt lgkmcnt(0)
''')
    for r in range(8):
        A(f'v_rcp_f32 v{V_X+r}, v{V_D+r}')
    A('s_nop 0')
    for k in range(4):
        A(f'v_pk_mul_f32 v[{V_X+2*k}:{V_X+2*k+1}], v[{V_X+2*k}:{V_X+2*k+1}], s[{S_LN2}:{S_LN2+1}]')
    for k in range(4):
        A(f'v_pk_mul_f32 v[{V_U+2*k}:{V_U+2*k+1}], v[{V_N+2*k}:{V_N+2*k+1}], v[{V_X+2*k}:{V_X+2*k+1}]')
    for k in range(4):
        A(f'v_pk_fma_f32 v[{V_X+2*k}:{V_X+2*k+1}], v[{V_D+2*k}:{V_D+2*k+1}], 0, v[{V_U+2*k}:{V_U+2*k+1}] op_sel_hi:[1,0,1]')
    A(f'''
    v_pk_add_f32 v[{V_X}:{V_X+1}], v[{V_X}:{V_X+1}], v[{V_X+2}:{V_X+3}]
    v_pk_add_f32 v[{V_X+4}:{V_X+5}], v[{V_X+4}:{V_X+5}], v[{V_X+6}:{V_X+7}]
    v_pk_add_f32 v[{V_X}:{V_X+1}], v[{V_X}:{V_X+1}], v[{V_X+4}:{V_X+5}]
    v_add_f32 v{V_X}, v{V_X}, v{V_X+1}
    v_cmp_class_f32_e64 vcc, v{V_X}, s{S_CLS}
    s_cbranch_vccnz K2_SLOW
K2_WRITE:
    s_cmp_eq_u32 s{S_PASS}, 0
    s_cbranch_scc1 K2_WR0
    ds_read_b128 v[{V_X}:{V_X+3}], v{V_ROW} offset:{K2_AGG}
    ds_read_b128 v[{V_X+4}:{V_X+7}], v{V_ROW} offset:{K2_AGG+128}
    s_waitcnt lgkmcnt(0)
''')
    for k in range(4):
        A(f'v_pk_add_f32 v[{V_U+2*k}:{V_U+2*k+1}], v[{V_U+2*k}:{V_U+2*k+1}], v[{V_X+2*k}:{V_X+2*k+1}]')
    A(f'''
K2_WR0:
    ds_write_b128 v{V_ROW}, v[{V_U}:{V_U+3}] offset:{K2_AGG}
    ds_write_b128 v{V_ROW}, v[{V_U+4}:{V_U+7}] offset:{K2_AGG+128}
    s_mov_b32 s{S_G}, s{S_G2}
    s_mov_b32 s{S_G2}, 0xff
    s_cmp_lg_u32 s{S_G}, 0xff
    s_cbranch_scc1 K2_GROUP
    s_branch K2_GROUPS_DONE
''')
    A(f'''
K2_SLOW:
    s_waitcnt vmcnt(0)
    s_mov_b32 s{SRD_PT+2}, s{S_NREC}
    s_sub_u32 s{S_T0}, s{S_MAX}, 1
    s_lshr_b32 s{S_T0}, s{S_T0}, 3
    s_lshl_b32 s{S_T0}, s{S_T0}, 5
    v_subrev_u32 v{V_A}, s{S_T0}, v{V_A}
    s_mov_b32 s{S_J}, 0
''')
    for i in range(8):
        A(f'v_mov_b32 v{V_N+i}, 0')
    A(f'''
K2_SLOOP:
    ds_read_u16 v{V_P0}, v{V_A}
    ds_read_u16_d16_hi v{V_E}, v{V_A} offset:2
    s_waitcnt lgkmcnt(0)
    buffer_load_dwordx4 v[{V_S}:{V_S+3}], v[{V_P0}:{V_P0+1}], s[{SRD_PT}:{SRD_PT+3}], 0 idxen offen
    s_waitcnt vmcnt(0)
    v_lshlrev_b64 v[{V_X}:{V_X+1}], 16, v[{V_S}:{V_S+1}]
    v_lshlrev_b64 v[{V_X+2}:{V_X+3}], 16, v[{V_S+2}:{V_S+3}]
    v_pk_fma_f32 v[{V_U}:{V_U+1}], v[{V_E}:{V_E+1}], v[{V_W}:{V_W+1}], v[{V_S}:{V_S+1}] op_sel:[0,0,0] op_sel_hi:[0,1,1]
    v_pk_fma_f32 v[{V_U+2}:{V_U+3}], v[{V_E}:{V_E+1}], v[{V_W+2}:{V_W+3}], v[{V_S+2}:{V_S+3}] op_sel:[0,0,0] op_sel_hi:[0,1,1]
    v_pk_fma_f32 v[{V_U+4}:{V_U+5}], v[{V_E}:{V_E+1}], v[{V_W+4}:{V_W+5}], v[{V_X}:{V_X+1}] op_sel:[0,0,0] op_sel_hi:[0,1,1]
    v_pk_fma_f32 v[{V_U+6}:{V_U+7}], v[{V_E}:{V_E+1}], v[{V_W+6}:{V_W+7}], v[{V_X+2}:{V_X+3}] op_sel:[0,0,0] op_sel_hi:[0,1,1]
''')
    for k in range(4):
        A(f'v_pk_add_f32 v[{V_U+2*k}:{V_U+2*k+1}], v[{V_U+2*k}:{V_U+2*k+1}], v[{V_Q+2*k}:{V_Q+2*k+1}]')
    for r in range(8):
        A(f'v_exp_f32 v{V_X+r}, v{V_U+r}')
    A('s_nop 0')
    for r in range(8):
        A(f'v_add_f32 v{V_X+r}, 1.0, v{V_X+r}')
    for r in range(8):
        A(f'v_rcp_f32 v{V_X+r}, v{V_X+r}')
    A(f'''
    v_cmp_lt_u32 vcc, s{S_J}, v{V_DEG}
    s_add_u32 s{S_J}, s{S_J}, 1
    s_mov_b64 exec, vcc
''')
    for r in range(8):
        A(f'v_fmac_f32 v{V_N+r}, v{V_U+r}, v{V_X+r}')
    A(f'''
    s_mov_b64 exec, -1
    v_add_u32 v{V_A}, 4, v{V_A}
    s_cmp_lt_u32 s{S_J}, s{S_MAX}
    s_cbranch_scc1 K2_SLOOP
''')
    for k in range(4):
        A(f'v_pk_mul_f32 v[{V_U+2*k}:{V_U+2*k+1}], v[{V_N+2*k}:{V_N+2*k+1}], s[{S_LN2}:{S_LN2+1}]')
    A('s_branch K2_WRITE')
    A('K2_GROUPS_DONE:')
    A('s_waitcnt vmcnt(0)')
    stamp(A, 7)
    A(f'''
    s_cmp_eq_u32 s{S_MORE}, 0
    s_cbranch_scc1 K2_EPI
    s_waitcnt lgkmcnt(0)
    s_barrier
    s_add_u32 s{S_PASS}, s{S_PASS}, 1
    v_lshrrev_b32 v29, 3, v0
    v_lshlrev_b32 v2, 10, v29
    v_and_b32 v28, 7, v0
    v_mul_u32_u24 v30, {CHUNK*8}, v29
    v_lshl_add_u32 v30, v28, 4, v30
    v_lshlrev_b32 v28, 1, v28
    s_branch K2_PASS
K2_EPI:
    s_cmp_ge_u32 s{S_WAVE}, 14
    s_cbranch_scc1 K2_EPI_IDLE
    s_and_b32 s{S_T0+1}, s{S_WAVE}, 1       ; t
    s_lshr_b32 s{S_T0}, s{S_WAVE}, 1
    s_lshl_b32 s{S_T0}, s{S_T0}, 5          ; 32*tile
    v_and_b32 v122, 31, v0
    v_add_u32 v122, s{S_T0}, v122           ; nloc
    v_bfe_u32 v123, v0, 5, 1                ; kh
    v_mul_u32_u24 v1, {ROWB}, v122
    v_lshl_add_u32 v1, v123, 4, v1           ; + kh*16
    s_lshl_b32 s{S_T0+2}, s{S_T0+1}, 12
    s_add_u32 s{S_T0+2}, s{S_T0+2}, {K2_WB}
    v_and_b32 v3, 63, v0
    v_lshlrev_b32 v2, 4, v3
    v_add_u32 v2, s{S_T0+2}, v2
    ds_read_b128 v[48:51], v2
    ds_read_b128 v[52:55], v2 offset:1024
    ds_read_b128 v[56:59], v2 offset:2048
    ds_read_b128 v[60:63], v2 offset:3072
''')
    srd(A, SRD_OUT, S_OUT, N*128)
    A(f'''
    s_waitcnt lgkmcnt(0)
    s_barrier
''')
    stamp(A, 8)
    for s in range(4):
        A(f'ds_read_b128 v[{64+8*s}:{67+8*s}], v1 offset:{K2_AGG+32*s}')
        A(f'ds_read_b128 v[{68+8*s}:{71+8*s}], v1 offset:{K2_AGG+32*s+128}')
    for s in range(4):
        A(f's_waitcnt lgkmcnt({6-2*s})')
        for k in range(4):
            A(f'v_cvt_pk_bf16_f32 v{32+4*s+k}, v{64+8*s+2*k}, v{65+8*s+2*k}')
    A('s_nop 1')
    for s in range(4):
        A(f'v_mfma_f32_32x32x16_bf16 v[{V_U0}:{V_U0+15}], v[{48+4*s}:{51+4*s}], v[{32+4*s}:{35+4*s}], v[{V_U0}:{V_U0+15}]')
    A(f'''
    s_mov_b32 s{S_T0+2}, {NLOG2E}
    s_mov_b32 s{S_T0+3}, {NLOG2E}
    s_mul_i32 s{S_T0}, s{S_WAVE}, 2560
    v_and_b32 v1, 31, v0
    v_mul_u32_u24 v1, 80, v1
    v_lshl_add_u32 v1, v123, 5, v1           ; row*80 + 32h
    v_add_u32 v1, s{S_T0}, v1
    v_lshrrev_b32 v2, 2, v3
    v_and_b32 v3, 3, v3                      ; quarter
    v_mul_u32_u24 v4, 80, v2
    v_lshl_add_u32 v4, v3, 4, v4
    v_add_u32 v4, s{S_T0}, v4
''')
    for k in range(8):
        A(f'v_pk_mul_f32 v[{32+2*k}:{33+2*k}], v[{V_U0+2*k}:{V_U0+2*k+1}], s[{S_T0+2}:{S_T0+3}]')
    for i in range(16):
        A(f'v_exp_f32 v{32+i}, v{32+i}')
    for k in range(8):
        A(f'v_pk_add_f32 v[{32+2*k}:{33+2*k}], v[{32+2*k}:{33+2*k}], 1.0 op_sel_hi:[1,0]')
    for i in range(16):
        A(f'v_rcp_f32 v{32+i}, v{32+i}')
    for k in range(8):
        A(f'v_pk_mul_f32 v[{32+2*k}:{33+2*k}], v[{V_U0+2*k}:{V_U0+2*k+1}], v[{32+2*k}:{33+2*k}]')
    for k in range(8):
        A(f'v_cvt_pk_bf16_f32 v{48+k}, v{32+2*k}, v{33+2*k}')
    A(f'''
    ds_write_b128 v1, v[48:51] offset:{K2_Q}
    ds_write_b128 v1, v[52:55] offset:{K2_Q+16}
    s_lshr_b32 s{S_T0}, s{S_WAVE}, 1
    s_lshl_b32 s{S_T0}, s{S_T0}, 5          ; 32*tile
    v_add_u32 v2, s{S_T0}, v2
    v_add_u32 v5, s{S_NB0}, v2
    v_lshlrev_b32 v5, 7, v5
    v_lshl_add_u32 v5, v3, 4, v5
    s_lshl_b32 s{S_T0+1}, s{S_T0+1}, 6       ; 64t bytes
    v_add_u32 v5, s{S_T0+1}, v5
    s_movk_i32 s{S_T0}, {NB}
    v_cmp_gt_u32 s[{S_T0+2}:{S_T0+3}], s{S_T0}, v2
    v_add_u32 v2, 16, v2
    v_cmp_gt_u32 vcc, s{S_T0}, v2
    s_waitcnt lgkmcnt(0)
    ds_read_b128 v[56:59], v4 offset:{K2_Q}
    ds_read_b128 v[60:63], v4 offset:{K2_Q+16*80}
    s_mov_b64 exec, s[{S_T0+2}:{S_T0+3}]
    s_waitcnt lgkmcnt(1)
    buffer_store_dwordx4 v[56:59], v5, s[{SRD_OUT}:{SRD_OUT+3}], 0 offen
    s_mov_b64 exec, vcc
    s_waitcnt lgkmcnt(0)
    buffer_store_dwordx4 v[60:63], v5, s[{SRD_OUT}:{SRD_OUT+3}], 0 offen offset:2048
K2_FIN:
''')
    if asm.STAMPS:
        A('s_mov_b64 exec, -1')
        A('s_waitcnt vmcnt(0)')
    stamp(A, 9)
    flush_stamps(A, 10, S_WS, 0x100000, tmpv=122)
    A(f'''
    s_endpgm
K2_EPI_IDLE:
    s_waitcnt lgkmcnt(0)
    s_barrier
''')
    stamp(A, 8)
    stamp(A, 9)
    flush_stamps(A, 10, S_WS, 0x100000, tmpv=122)
    A('''
K2_END:
    s_endpgm
''')
```

```python
N = 50000
E = 800000
NB = 196
CHUNK = 3136
K1_GRID = 513
MAGIC196 = 85599
NLOG2E = 0xbfb8aa3b
NLN2 = 0xbf317218
WS_REC = 0
WS_SEG = 0x640000
WS_PT = 0x700000
WS_FRAG = 0xE00000
K1_CNT = 0
K1_OFF = 1024
K1_STAGE = 2048
K1_LDS = 8192 + 224*144
ROWB = 272
K2_CNT = 0
K2_OFF = 1024
K2_BINS = 2048
K2_GM = 2304
K2_MISC = 2560
K2_ORD = 2624
K2_Q = K2_ORD + 2048
K2_AGG = K2_Q + 200*ROWB
K2_REC = K2_AGG + 200*ROWB
K2_WB = K2_REC + 32768 + 128
K2_W3 = K2_WB + 8192
K2_LDS = K2_W3 + 256
K2_FR = K2_AGG + 224*144
assert K2_FR + 16384 <= K2_REC and K2_W3 == K2_WB + 8192
NGROUPS = 25
import os as _os
if _os.environ.get('ASG','b') == 'a':
    T1 = [0, 6, 2, 1, 7, 10, 4, 3, 9, 12, 5, 8, 15, 14, 11, 13]
    T2 = [23, 24, 21, 20, 16, 22, 18, 19, 255, 17, 255, 255, 255, 255, 255, 255]
else:
    T1 = [0, 6, 2, 1, 7, 10, 4, 3, 16, 17, 18, 19, 23, 24, 21, 20]
    T2 = [15, 14, 11, 13, 9, 12, 5, 8, 255, 22, 255, 255, 255, 255, 255, 255]
```

```python
from asm import *
import asm
from consts import *

def srd(A, d, base, nbytes_or_records, stride=0):
    A(f's_mov_b32 s{d}, s{base}')
    if stride:
        A(f's_and_b32 s{d+1}, s{base+1}, 0xffff')
        A(f's_or_b32 s{d+1}, s{d+1}, {stride<<16}')
    else:
        A(f's_and_b32 s{d+1}, s{base+1}, 0xffff')
    A(f's_mov_b32 s{d+2}, {nbytes_or_records}')
    A(f's_mov_b32 s{d+3}, 0x20000')

def scan64(A, v, tmp=None):
    for sh in (1, 2, 4, 8):
        A('s_nop 1')
        A(f'v_add_u32_dpp v{v}, v{v}, v{v} row_shr:{sh} row_mask:0xf bank_mask:0xf bound_ctrl:1')
    A('s_nop 1')
    A(f'v_add_u32_dpp v{v}, v{v}, v{v} row_bcast:15 row_mask:0xa bank_mask:0xf')
    A('s_nop 1')
    A(f'v_add_u32_dpp v{v}, v{v}, v{v} row_bcast:31 row_mask:0xc bank_mask:0xf')

import os
XNT = '' if 'x1plain' in os.environ.get('EXP','') else 'nt'
ST1 = os.environ.get('ST1','sc1')
def gen_k1(A):
    A('''
.globl k1_kernel
.p2align 8
.type k1_kernel,@function
k1_kernel:
''')
    stamp(A,0)
    A('''
    s_cmp_ge_u32 s2, %d
    s_cbranch_scc1 K1_END
    s_load_dwordx4 s[4:7], s[0:1], 0      ; x, e_attr
    s_load_dwordx4 s[8:11], s[0:1], 16    ; src, dst
    s_load_dwordx4 s[12:15], s[0:1], 32   ; w_msg, w_upd
    s_load_dwordx2 s[16:17], s[0:1], 64   ; ws
    s_cmp_ge_u32 s2, 512
    s_cbranch_scc1 K1_PREP
    s_cmp_ge_u32 s2, 256
    s_cbranch_scc1 K1_PWG
''' % K1_GRID)
    A(f'''
    v_lshlrev_b32 v1, 2, v0               ; 4t
    s_mul_i32 s3, s2, {CHUNK}
    v_add_u32 v2, s3, v1
    v_and_b32 v3, 255, v0
    v_lshlrev_b32 v3, 2, v3
    v_mov_b32 v4, 0
    ds_write_b32 v3, v4 offset:{K1_CNT}
    s_movk_i32 s18, {CHUNK//8}
    v_cmp_gt_u32 s[28:29], s18, v0
    v_cmp_gt_u32 vcc, {E}, v2
    s_and_b64 s[20:21], s[28:29], vcc     ; valid A
    v_add_u32 v3, {CHUNK//2}, v2
    v_cmp_gt_u32 vcc, {E}, v3
    s_and_b64 s[28:29], s[28:29], vcc     ; valid B
    v_lshlrev_b32 v5, 2, v2
    v_lshlrev_b32 v6, 1, v2
    v_add_u32 v44, {CHUNK//2*4}, v5
    v_add_u32 v45, {CHUNK//2*2}, v6
    s_waitcnt lgkmcnt(0)
    s_mov_b64 s[22:23], exec
    s_mov_b64 exec, s[20:21]
    global_load_dwordx4 v[8:11], v5, s[10:11] nt         ; dst A
    s_mov_b64 exec, s[28:29]
    global_load_dwordx4 v[12:15], v44, s[10:11] nt       ; dst B
    s_mov_b64 exec, s[20:21]
    global_load_dwordx4 v[16:19], v5, s[8:9] nt          ; src A
    global_load_dwordx2 v[24:25], v6, s[6:7] nt          ; e A
    s_mov_b64 exec, s[28:29]
    global_load_dwordx4 v[20:23], v44, s[8:9] nt         ; src B
    global_load_dwordx2 v[26:27], v45, s[6:7] nt         ; e B
    s_mov_b64 exec, s[22:23]
    s_barrier
    s_mov_b32 s18, {MAGIC196}
    s_mov_b32 s19, {-NB & 0xffffffff}
    s_mov_b32 s24, 0xffff0000
    v_mov_b32 v7, 1
''')
    stamp(A,1)
    A('s_waitcnt vmcnt(4)')
    stamp(A,2)
    for k in range(8):
        if k == 0:
            A('s_mov_b64 exec, s[20:21]')
        if k == 4:
            A('s_mov_b64 exec, s[28:29]')
        A(f'v_mul_u32_u24 v{28+k}, s18, v{8+k}')
        A(f'v_lshrrev_b32 v{28+k}, 24, v{28+k}')
        A(f'v_mad_i32_i24 v{8+k}, v{28+k}, s19, v{8+k}')
        A(f'v_lshlrev_b32 v{28+k}, 2, v{28+k}')
        A(f'ds_add_rtn_u32 v{36+k}, v{28+k}, v7 offset:{K1_CNT}')
    A('s_mov_b64 exec, s[22:23]')
    A('s_waitcnt vmcnt(0)')
    if 'smallsrc' in os.environ.get('EXP',''):
        for k in range(8):
            A(f'v_and_b32 v{16+k}, 0x7ff, v{16+k}')
    for k in range(8):
        ed = 24 + k//2
        if k % 2 == 0:
            A(f'v_lshl_or_b32 v{16+k}, v{ed}, 16, v{16+k}')
        else:
            A(f'v_and_or_b32 v{16+k}, v{ed}, s24, v{16+k}')
    A(f'''
    s_waitcnt lgkmcnt(0)
''')
    stamp(A,3)
    A(f'''
    s_barrier
    v_readfirstlane_b32 s25, v0
    s_cmp_ge_u32 s25, 64
    s_cbranch_scc1 K1_BIN_NOSCAN
    v_lshlrev_b32 v44, 4, v0
    ds_read_b128 v[48:51], v44 offset:{K1_CNT}
    s_waitcnt lgkmcnt(0)
    v_add_u32 v52, v48, v49               ; p2
    v_add_u32 v53, v52, v50               ; p3
    v_add_u32 v54, v53, v51               ; tot
    v_mov_b32 v55, v54
''')
    scan64(A, 55)
    A(f'''
    v_sub_u32 v56, v55, v54
    v_add_u32 v57, v56, v48
    v_add_u32 v58, v56, v52
    v_add_u32 v59, v56, v53
    ds_write_b128 v44, v[56:59] offset:{K1_OFF}
    v_lshl_or_b32 v48, v48, 16, v56
    v_lshl_or_b32 v49, v49, 16, v57
    v_lshl_or_b32 v50, v50, 16, v58
    v_lshl_or_b32 v51, v51, 16, v59
    s_lshl_b32 s26, s2, 10
    s_add_u32 s26, s26, {WS_SEG}
    v_add_u32 v45, s26, v44
    global_store_dwordx4 v45, v[48:51], s[16:17] {ST1}
    s_waitcnt lgkmcnt(0)
K1_BIN_NOSCAN:
    s_barrier
''')
    for k in range(8):
        if k % 4 == 0:
            A('s_mov_b64 exec, s[%d:%d]' % ((20,21) if k == 0 else (28,29)))
        A(f'ds_read_b32 v{28+k}, v{28+k} offset:{K1_OFF}')
    A('s_mov_b64 exec, s[22:23]')
    A('s_waitcnt lgkmcnt(0)')
    for k in range(8):
        A(f'v_add_lshl_u32 v{28+k}, v{28+k}, v{36+k}, 3')
        A(f'v_mov_b32 v{44+2*k}, v{16+k}')
        A(f'v_lshlrev_b32 v{45+2*k}, 2, v{8+k}')
    for k in range(8):
        if k % 4 == 0:
            A('s_mov_b64 exec, s[%d:%d]' % ((20,21) if k == 0 else (28,29)))
        A(f'ds_write_b64 v{28+k}, v[{44+2*k}:{45+2*k}] offset:{K1_STAGE}')
    A(f'''
    s_mov_b64 exec, s[22:23]
    s_waitcnt lgkmcnt(0)
    s_barrier
''')
    stamp(A,4)
    A(f'''
    v_lshlrev_b32 v1, 4, v0                ; 16*t
    s_mul_i32 s26, s2, {CHUNK*8}
    s_add_u32 s26, s26, {WS_REC}
    v_add_u32 v2, s26, v1
    ds_read_b128 v[8:11], v1 offset:{K1_STAGE}
    ds_read_b128 v[12:15], v1 offset:{K1_STAGE+8192}
    ds_read_b128 v[16:19], v1 offset:{K1_STAGE+16384}
    v_cmp_gt_u32 vcc, 32, v0
    s_and_saveexec_b64 s[22:23], vcc
    s_cbranch_execz K1_BIN_SK4
    ds_read_b128 v[20:23], v1 offset:{K1_STAGE+24576}
    v_add_u32 v3, 24576, v2
    s_waitcnt lgkmcnt(0)
    global_store_dwordx4 v3, v[20:23], s[16:17] {ST1}
K1_BIN_SK4:
    s_mov_b64 exec, s[22:23]
    v_add_u32 v3, 8192, v2
    v_add_u32 v4, 16384, v2
    s_waitcnt lgkmcnt(0)
    global_store_dwordx4 v2, v[8:11], s[16:17] {ST1}
    global_store_dwordx4 v3, v[12:15], s[16:17] {ST1}
    global_store_dwordx4 v4, v[16:19], s[16:17] {ST1}
''')
    if asm.STAMPS:
        A('s_waitcnt vmcnt(0)')
    stamp(A,5)
    flush_stamps(A, 6, 16, 0)
    A('s_endpgm')
    A('''
K1_PWG:
    s_sub_u32 s2, s2, 256
''')
    A(f"""
    v_lshlrev_b32 v1, 4, v0
    v_lshrrev_b32 v2, 6, v0
    s_mul_i32 s18, s2, {NB}
    v_readfirstlane_b32 s3, v2
    s_nop 0
    s_mul_i32 s18, s2, {NB}
    s_lshl_b32 s19, s18, 7                ; *128
    v_add_u32 v14, s19, v1
    v_lshrrev_b32 v15, 3, v0              ; row = t>>3
    v_mul_u32_u24 v15, 144, v15
    v_and_b32 v13, 7, v0
    v_lshl_add_u32 v15, v13, 4, v15
    s_waitcnt lgkmcnt(0)
    global_load_dwordx4 v[8:11], v1, s[12:13]
""")
    srd(A, 20, 4, N*128)
    A(f"""
    buffer_load_dwordx4 v[16:19], v14, s[20:23], 0 offen {XNT}
    v_add_u32 v12, 8192, v14
    buffer_load_dwordx4 v[20:23], v12, s[20:23], 0 offen {XNT}
    v_add_u32 v12, 16384, v14
    buffer_load_dwordx4 v[24:27], v12, s[20:23], 0 offen {XNT}
    v_add_u32 v12, 24576, v14
    v_cmp_gt_u32 s[30:31], 32, v0
    s_mov_b64 exec, s[30:31]
""")
    A(f"""
    buffer_load_dwordx4 v[28:31], v12, s[20:23], 0 offen {XNT}
    s_mov_b64 exec, -1
    s_add_u32 s24, s16, {WS_PT}
    s_addc_u32 s25, s17, 0
    s_and_b32 s25, s25, 0xffff
    s_mov_b32 s26, {N*128}
    s_mov_b32 s27, 0x20000
    s_lshl_b32 s19, s3, 5                 ; 32*wave
    v_and_b32 v3, 31, v0                  ; n
    v_add_u32 v4, s19, v3
    v_add_u32 v5, s18, v4
    v_bfe_u32 v6, v0, 5, 1                ; kh / h
    v_lshlrev_b32 v7, 7, v5               ; node*128
    s_waitcnt vmcnt(4)
    ds_write_b128 v1, v[8:11]
    s_waitcnt vmcnt(3)
    ds_write_b128 v15, v[16:19] offset:8192
    s_waitcnt vmcnt(2)
    ds_write_b128 v15, v[20:23] offset:{8192 + 64*144}
    s_waitcnt vmcnt(1)
    ds_write_b128 v15, v[24:27] offset:{8192 + 128*144}
    s_waitcnt vmcnt(0)
    s_mov_b64 exec, s[30:31]
    ds_write_b128 v15, v[28:31] offset:{8192 + 192*144}
    s_mov_b64 exec, -1
    s_waitcnt lgkmcnt(0)
    s_barrier
    s_cmp_ge_u32 s3, 7
    s_cbranch_scc1 K1_END
""")
    stamp(A,1)
    A(f"""
    s_mov_b32 s20, s19
    s_mov_b32 s21, s18
    v_mul_u32_u24 v12, 144, v4
    v_lshl_add_u32 v12, v6, 4, v12
    ds_read_b128 v[16:19], v12 offset:8192
    ds_read_b128 v[20:23], v12 offset:{8192+32}
    ds_read_b128 v[24:27], v12 offset:{8192+64}
    ds_read_b128 v[28:31], v12 offset:{8192+96}
""")
    def tr_addr(A, vd, vt1, vt2):
        A(f'''
    v_and_b32 v{vt1}, 63, v0
    v_bfe_u32 v{vd}, v{vt1}, 2, 2          ; r
    v_bfe_u32 v{vt2}, v{vt1}, 5, 1         ; kh
    v_lshl_add_u32 v{vd}, v{vt2}, 3, v{vd} ; 8kh + r
    v_lshlrev_b32 v{vd}, 7, v{vd}          ; *128 bytes
    v_and_b32 v{vt2}, 1, v{vt1}            ; c&1
    v_lshl_add_u32 v{vd}, v{vt2}, 6, v{vd} ; +32*2*(c&1)
    v_bfe_u32 v{vt2}, v{vt1}, 4, 1         ; G&1
    v_lshl_add_u32 v{vd}, v{vt2}, 4, v{vd} ; +4*2*2*(G&1)=16
    v_bfe_u32 v{vt2}, v{vt1}, 1, 1         ; c>>1
    v_lshl_add_u32 v{vd}, v{vt2}, 3, v{vd} ; +4*2*(c>>1)=8
''')
    tr_addr(A, 13, 14, 15)
    for t in range(2):
        for s in range(4):
            base = 32 + (t*4+s)*4
            for q in range(2):
                off = (16*s + 4*q)*128 + 16*t*2
                A(f'ds_read_b64_tr_b16 v[{base+2*q}:{base+2*q+1}], v13 offset:{off}')
    for i in range(32):
        A(f'v_mov_b32 v{64+i}, 0')
    A('s_waitcnt lgkmcnt(0)')
    stamp(A,2)
    for s in range(4):
        for t in range(2):
            base = 32 + (t*4+s)*4
            A(f'v_mfma_f32_32x32x16_bf16 v[{64+16*t}:{79+16*t}], v[{base}:{base+3}], v[{16+4*s}:{19+4*s}], v[{64+16*t}:{79+16*t}]')
    A('s_nop 15')
    A(f's_mov_b32 s18, {NLOG2E}')
    A(f's_mov_b32 s19, {NLOG2E}')
    A('s_mov_b32 s28, 0x07060302')
    A('s_mov_b32 s29, 0x8000')
    for k in range(16):
        A(f'v_pk_mul_f32 v[{64+2*k}:{65+2*k}], v[{64+2*k}:{65+2*k}], s[18:19]')
    for t in range(2):
        for cc in range(2):
            o = 32 + (t*2+cc)*4
            for b_ in range(4):
                hi, lo = 64+16*t+8*cc+b_, 64+16*t+8*cc+4+b_
                if b_ % 2 == 0:
                    A(f'v_add_u32 v{lo}, s29, v{lo}')
                A(f'v_perm_b32 v{o+b_}, v{hi}, v{lo}, s28')
    A(f"""
    v_mul_u32_u24 v12, 144, v4
    v_lshl_add_u32 v12, v6, 6, v12
    ds_write_b128 v12, v[32:35] offset:8192
    ds_write_b128 v12, v[36:39] offset:{8192+16}
    ds_write_b128 v12, v[40:43] offset:{8192+32}
    ds_write_b128 v12, v[44:47] offset:{8192+48}
    v_and_b32 v3, 63, v0
    v_lshrrev_b32 v13, 3, v3               ; row in group of 8
    v_add_u32 v13, s19k, v13               ; + 32*wave -> local row
    v_and_b32 v14, 7, v0                   ; chunk
    v_mul_u32_u24 v15, 144, v13
    v_lshl_add_u32 v15, v14, 4, v15        ; lds addr
    v_add_u32 v12, s18k, v13               ; global node
    v_lshlrev_b32 v12, 7, v12
    v_lshl_add_u32 v12, v14, 4, v12        ; global byte offset
    s_waitcnt lgkmcnt(0)
    ds_read_b128 v[48:51], v15 offset:8192
    ds_read_b128 v[52:55], v15 offset:{8192+8*144}
    ds_read_b128 v[56:59], v15 offset:{8192+16*144}
    ds_read_b128 v[60:63], v15 offset:{8192+24*144}
    s_movk_i32 s28, {NB}
""".replace('s19k', 's20').replace('s18k', 's21'))
    for k in range(4):
        A(f"""
    v_add_u32 v16, {8*k}, v13
    v_cmp_gt_u32 vcc, s28, v16
    s_and_saveexec_b64 s[30:31], vcc
    s_waitcnt lgkmcnt({3-k})
    buffer_store_dwordx4 v[{48+4*k}:{51+4*k}], v12, s[24:27], 0 offen offset:{1024*k} {ST1}
    s_mov_b64 exec, s[30:31]
""")
    stamp(A,3)
    if asm.STAMPS:
        A('s_waitcnt vmcnt(0)')
    stamp(A,4)
    stamp(A,5)
    if asm.STAMPS: A('s_add_u32 s2, s2, 256')
    flush_stamps(A, 6, 16, 0)
    A('s_endpgm')
    A(f'''
K1_PREP:
    v_lshlrev_b32 v1, 4, v0
    v_lshrrev_b32 v2, 6, v0
    s_nop 0
    v_readfirstlane_b32 s3, v2
    s_waitcnt lgkmcnt(0)
    v_add_u32 v2, 8192, v1
    global_load_dwordx4 v[8:11], v2, s[12:13]      ; W2 rows 64..127
    global_load_dwordx4 v[12:15], v1, s[14:15]
    global_load_dwordx4 v[16:19], v2, s[14:15]
    s_waitcnt vmcnt(0)
    ds_write_b128 v1, v[8:11]
    ds_write_b128 v1, v[12:15] offset:8192
    ds_write_b128 v1, v[16:19] offset:16384
    s_waitcnt lgkmcnt(0)
    s_barrier
''')
    tr_addr(A, 13, 14, 15)
    A(f"""
    v_and_b32 v14, 63, v0
    v_bfe_u32 v12, v14, 2, 2               ; r
    v_bfe_u32 v15, v14, 5, 1               ; kh
    v_lshl_add_u32 v12, v15, 3, v12        ; 8kh + r
    v_lshlrev_b32 v12, 7, v12
    v_and_b32 v15, 1, v14                  ; c&1
    v_lshl_add_u32 v12, v15, 5, v12        ; +16*2*(c&1)
    v_bfe_u32 v15, v14, 4, 1               ; G&1
    v_lshl_add_u32 v12, v15, 4, v12        ; +8*2*(G&1)
    v_bfe_u32 v15, v14, 1, 1               ; c>>1
    v_lshl_add_u32 v12, v15, 3, v12        ; +4*2*(c>>1)
    v_and_b32 v1, 63, v0
    v_lshlrev_b32 v1, 4, v1               ; lane*16
""")
    A(f"""
    s_lshr_b32 s21, s3, 2                  ; t
    s_and_b32 s20, s3, 3                   ; s
    s_lshl_b32 s20, s20, 11                ; 16*s*128
    s_lshl_b32 s22, s21, 5
    s_add_u32 s22, s22, s20
    v_add_u32 v14, s22, v13
    ds_read_b64_tr_b16 v[16:17], v14
    ds_read_b64_tr_b16 v[18:19], v14 offset:512
    s_lshl_b32 s22, s21, 6
    s_add_u32 s22, s22, s20
    s_add_u32 s22, s22, 8192
    v_add_u32 v14, s22, v12
    ds_read_b64_tr_b16 v[20:21], v14
    ds_read_b64_tr_b16 v[22:23], v14 offset:512
    ds_read_b64_tr_b16 v[24:25], v14 offset:8192
    ds_read_b64_tr_b16 v[26:27], v14 offset:{8192+512}
    s_lshl_b32 s19, s3, 10
    s_add_u32 s19, s19, {WS_FRAG}
    v_add_u32 v15, s19, v1
    s_waitcnt lgkmcnt(4)
    global_store_dwordx4 v15, v[16:19], s[16:17] {ST1}
    v_add_u32 v15, 8192, v15
    s_waitcnt lgkmcnt(2)
    global_store_dwordx4 v15, v[20:23], s[16:17] {ST1}
    v_add_u32 v15, 8192, v15
    s_waitcnt lgkmcnt(0)
    global_store_dwordx4 v15, v[24:27], s[16:17] {ST1}
    s_cmp_eq_u32 s3, 0
    s_cbranch_scc0 K1_END
    v_lshlrev_b32 v2, 1, v0
    v_add_u32 v2, {128*128}, v2
    global_load_ushort v3, v2, s[12:13]
    v_lshlrev_b32 v4, 2, v0
    v_add_u32 v4, {WS_FRAG + 24*1024}, v4
    s_waitcnt vmcnt(0)
    v_lshlrev_b32 v3, 16, v3
    v_mul_f32 v3, {NLOG2E}, v3
    global_store_dword v4, v3, s[16:17] {ST1}
""")
    A('''
K1_END:
    s_endpgm
''')
```

```python
from asm import *
import asm
from consts import *
from k1 import srd, scan64

S_B = 2
S_WAVE = 3
S_X = 4
S_WM = 6
S_OUT = 8
S_WS = 10
SRD_X = 12
SRD_PT = 16
SRD_PTR = 20
SRD_OUT = 24
S_PASS = 28
S_J = 29
S_MAX = 30
S_PF = 31
S_MORE = 32
S_G = 33
S_NB0 = 34
S_MIN = 35
S_LN2 = 36
S_CLS = 38
S_G2 = 39
S_T0 = 40
SRD_WS = 44
S_MSK = 48
S_BK = 84
S_SO = 85
S_NREC = 93
S_FIRST = 96
S_NX = 97
S_MQ = 100
S_C200 = 35
S_TG1 = 98
S_TG2 = 99
S_MX = 90+4
S_C544 = 35
V_U0 = 8
V_S = 32; V_N = 64; V_D = 72; V_Q = 80; V_W = 88; V_U = 96; V_X = 104
V_P0 = 112; V_P1 = 114; V_E = 116; V_A = 118; V_DEG = 119; V_ROW = 120; V_C16 = 121
import os
EXP = os.environ.get('EXP','')
XNT = '' if 'x2plain' in EXP else 'nt'
ST2 = os.environ.get('ST2','sc1')

def pack8(lst):
    v = 0
    for i, x in enumerate(lst):
        v |= (x & 0xff) << (8*i)
    return v & 0xffffffff, v >> 32

RD = int(os.environ.get('RD','2'))
UR = int(os.environ.get('UR','4'))
SLOT = [32+4*j for j in range(8)] + [4, 24, 28, 124]
IDXR = [96+j for j in range(8)] + [108, 109, 110, 111]
S_ADV = 91
PF = os.environ.get('PF','')
NPF = int(os.environ.get('NPF','4'))
PFD = 44
S_K4096 = 92

def l2_prefetch(A, npf):
    A(f"""
    s_lshr_b32 s{S_T0+2}, s2, 3
    s_mul_i32 s{S_T0+2}, s{S_T0+2}, {16*npf*1024}
    s_mul_i32 s{S_T0+3}, s{S_WAVE}, {npf*1024}
    s_add_u32 s{S_T0+2}, s{S_T0+2}, s{S_T0+3}
    v_and_b32 v127, 63, v0
    v_lshlrev_b32 v127, 4, v127
    v_add_u32 v127, s{S_T0+2}, v127
""")
    for k in range(npf):
        A(f'buffer_load_dword v125, v127, s[{SRD_PTR}:{SRD_PTR+3}], 0 offen offset:{1024*k}' if k < 4 else f'buffer_load_dword v125, v127, s[{SRD_PTR}:{SRD_PTR+3}], s{S_K4096} offen offset:{1024*(k-4)}')

def gen_k2(A):
    A("""
.globl k2_kernel
.p2align 8
.type k2_kernel,@function
k2_kernel:
""")
    stamp(A, 0)
    lo1, hi1 = pack8(T1[:8]); lo2, hi2 = pack8(T1[8:])
    lo3, hi3 = pack8(T2[:8]); lo4, hi4 = pack8(T2[8:])
    A(f"""
    s_cmp_ge_u32 s2, 256
    s_cbranch_scc1 K2_END
    s_load_dwordx2 s[4:5], s[0:1], 0
    s_load_dwordx2 s[6:7], s[0:1], 32
    s_load_dwordx2 s[8:9], s[0:1], 48
    s_load_dwordx2 s[10:11], s[0:1], 64
    s_and_b32 s{S_BK}, s2, 7
    s_lshl_b32 s{S_BK}, s{S_BK}, 5
    s_lshr_b32 s{S_T0}, s2, 3
    s_add_u32 s{S_BK}, s{S_BK}, s{S_T0}
    v_lshrrev_b32 v1, 6, v0
    s_mul_i32 s{S_NB0}, s{S_BK}, {NB}
    v_readfirstlane_b32 s{S_WAVE}, v1
    s_mov_b32 s{S_PASS}, 0
    s_lshl_b32 s{S_T0}, s{S_BK}, 2
    s_add_u32 s{S_SO}, s{S_T0}, {WS_SEG}
    s_add_u32 s{S_SO+1}, s{S_SO}, 0x20000
    v_lshrrev_b32 v29, 3, v0                 ; s = t>>3 (0..127)
    v_lshlrev_b32 v2, 10, v29
    v_and_b32 v28, 7, v0                     ; i
    v_mul_u32_u24 v30, {CHUNK*8}, v29        ; s*25088
    v_lshl_add_u32 v30, v28, 4, v30          ; base0 = s*25088 + i*16
    v_lshlrev_b32 v{V_C16}, 4, v28           ; c*16
    v_lshlrev_b32 v28, 1, v28                ; 2i
    s_waitcnt lgkmcnt(0)
    s_mov_b32 s{SRD_WS}, s{S_WS}
    s_and_b32 s{SRD_WS+1}, s{S_WS+1}, 0xffff
    s_mov_b32 s{SRD_WS+2}, {WS_SEG + 256*1024}
    s_mov_b32 s{SRD_WS+3}, 0x20000
    buffer_load_dword v4, v2, s[{SRD_WS}:{SRD_WS+3}], s{S_SO} offen
    buffer_load_dword v5, v2, s[{SRD_WS}:{SRD_WS+3}], s{S_SO+1} offen
    s_mov_b32 s{S_LN2}, {NLN2}
    s_mov_b32 s{S_LN2+1}, {NLN2}
    s_movk_i32 s{S_CLS}, 0x207
    s_movk_i32 s{S_C200}, 200
    s_movk_i32 s{S_K4096}, 4096
    s_mov_b32 s{S_SO+4}, {WS_REC}
    s_mov_b32 s{S_SO+5}, {WS_REC + 128*CHUNK*8}
""")
    srd(A, SRD_X, S_X, N*128)
    srd(A, SRD_OUT, S_OUT, N*128)
    A(f"""
    s_add_u32 s{SRD_PT}, s{S_WS}, {WS_PT}
    s_addc_u32 s{SRD_PT+1}, s{S_WS+1}, 0
    s_and_b32 s{SRD_PT+1}, s{SRD_PT+1}, 0xffff
    s_mov_b32 s{SRD_PTR}, s{SRD_PT}
    s_mov_b32 s{SRD_PTR+1}, s{SRD_PT+1}
    s_or_b32 s{SRD_PT+1}, s{SRD_PT+1}, {128<<16}
    s_mov_b32 s{SRD_PT+2}, {N}
    s_mov_b32 s{SRD_PT+3}, 0x20000
    s_mov_b32 s{SRD_PTR+2}, {N*128}
    s_mov_b32 s{SRD_PTR+3}, 0x20000
    s_mov_b32 s{S_NREC}, {N}
    s_cmp_lt_u32 s{S_WAVE}, 8
    s_mov_b32 s{S_T0}, {lo2:#x}
    s_cmov_b32 s{S_T0}, {lo1:#x}
    s_mov_b32 s{S_T0+1}, {hi2:#x}
    s_cmov_b32 s{S_T0+1}, {hi1:#x}
    s_mov_b32 s{S_T0+2}, {lo4:#x}
    s_cmov_b32 s{S_T0+2}, {lo3:#x}
    s_mov_b32 s{S_T0+3}, {hi4:#x}
    s_cmov_b32 s{S_T0+3}, {hi3:#x}
    s_and_b32 s{S_TG1}, s{S_WAVE}, 7
    s_lshl_b32 s{S_TG1}, s{S_TG1}, 3
    s_lshr_b64 s[{S_T0}:{S_T0+1}], s[{S_T0}:{S_T0+1}], s{S_TG1}
    s_lshr_b64 s[{S_T0+2}:{S_T0+3}], s[{S_T0+2}:{S_T0+3}], s{S_TG1}
    s_and_b32 s{S_TG1}, s{S_T0}, 0xff
    s_and_b32 s{S_TG2}, s{S_T0+2}, 0xff
    v_mov_b32 v{V_P0+1}, v{V_C16}
    v_mov_b32 v{V_P1+1}, v{V_C16}
    v_mov_b32 v{V_E}, 0
    v_mov_b32 v{V_E+1}, 0
""")
    if 'nogather' in EXP:
        A(f's_mov_b32 s{S_NREC}, 0')
        A(f's_mov_b32 s{SRD_PTR+2}, 0')
    A(f"""
    s_branch K2_PASS0
K2_PASS:
    buffer_load_dword v4, v2, s[{SRD_WS}:{SRD_WS+3}], s{S_SO} offen
    buffer_load_dword v5, v2, s[{SRD_WS}:{SRD_WS+3}], s{S_SO+1} offen
K2_PASS0:
    s_mov_b32 s{S_G}, s{S_TG1}
    s_mov_b32 s{S_G2}, s{S_TG2}
    s_mov_b32 s{S_FIRST}, s{S_PASS}
    v_mov_b32 v3, 0
    v_lshlrev_b32 v1, 2, v0
    v_cmp_gt_u32 vcc, 256, v0
    s_and_saveexec_b64 s[{S_T0+2}:{S_T0+3}], vcc
    ds_write_b32 v1, v3 offset:{K2_CNT}
    v_cmp_gt_u32 vcc, 144, v0
    s_and_b64 exec, exec, vcc
    ds_write_b32 v1, v3 offset:{K2_BINS}
    s_mov_b64 exec, s[{S_T0+2}:{S_T0+3}]
    s_lshl_b32 s{S_T0}, s{S_PASS}, 5
    v_add_u32 v31, s{S_T0}, v28              ; slot0 = 2i + 32p
    s_lshl_b32 s{S_T0}, s{S_PASS}, 8
    v_add_u32 v1, s{S_T0}, v30               ; base0 + 256p
    v_add_u32 v2, 1, v31
    v_add_u32 v3, 16, v31
    v_add_u32 v6, 17, v31
    v_add_u32 v7, 32, v31
    s_waitcnt lgkmcnt(0)
    s_barrier
    s_waitcnt vmcnt(0)
""")
    if 'qst' not in EXP: stamp(A, 1)
    for rho in range(2):
        m0 = S_MSK + 8*rho
        R = 96 + 8*rho
        A(f"""
    v_mad_u32_u16 v{R}, v{4+rho}, 8, v1
    v_cmp_lt_u32_sdwa s[{m0}:{m0+1}], v31, v{4+rho} src0_sel:DWORD src1_sel:WORD_1
    v_cmp_lt_u32_sdwa s[{m0+4}:{m0+5}], v3, v{4+rho} src0_sel:DWORD src1_sel:WORD_1
    v_cmp_lt_u32_sdwa s[{m0+2}:{m0+3}], v2, v{4+rho} src0_sel:DWORD src1_sel:WORD_1
    v_cmp_lt_u32_sdwa s[{m0+6}:{m0+7}], v6, v{4+rho} src0_sel:DWORD src1_sel:WORD_1
    v_cmp_lt_u32_sdwa vcc, v7, v{4+rho} src0_sel:DWORD src1_sel:WORD_1
    s_mov_b64 exec, s[{m0}:{m0+1}]
    buffer_load_dwordx4 v[{R}:{R+3}], v{R}, s[{SRD_WS}:{SRD_WS+3}], s{S_SO+4+rho} offen
    v_add_u32 v{R+4}, 128, v{R}
    s_mov_b64 exec, s[{m0+4}:{m0+5}]
    buffer_load_dwordx4 v[{R+4}:{R+7}], v{R+4}, s[{SRD_WS}:{SRD_WS+3}], s{S_SO+4+rho} offen
    s_mov_b64 exec, -1
""".replace(f"""    buffer_load_dwordx4 v[{R}:{R+3}], v{R}, s[{SRD_WS}:{SRD_WS+3}], s{S_SO+4+rho} offen
    v_add_u32 v{R+4}, 128, v{R}
    s_mov_b64 exec, s[{m0+4}:{m0+5}]
    buffer_load_dwordx4 v[{R+4}:{R+7}], v{R+4}, s[{SRD_WS}:{SRD_WS+3}], s{S_SO+4+rho} offen
""", f"""    s_mov_b64 exec, s[{m0+4}:{m0+5}]
    buffer_load_dwordx4 v[{R+4}:{R+7}], v{R}, s[{SRD_WS}:{SRD_WS+3}], s{S_SO+4+rho} offen offset:128
    s_mov_b64 exec, s[{m0}:{m0+1}]
    buffer_load_dwordx4 v[{R}:{R+3}], v{R}, s[{SRD_WS}:{SRD_WS+3}], s{S_SO+4+rho} offen
"""))
        if rho == 0:
            A(f's_mov_b64 s[{S_T0}:{S_T0+1}], vcc')
        else:
            A(f's_or_b64 s[{S_T0}:{S_T0+1}], s[{S_T0}:{S_T0+1}], vcc')
    A(f"""
    s_cmp_eq_u64 s[{S_T0}:{S_T0+1}], 0
    s_cbranch_scc1 K2_NOMORE
    v_mov_b32 v1, {K2_MISC}
    v_mov_b32 v2, 1
    ds_write_b32 v1, v2
K2_NOMORE:
    s_cmp_lg_u32 s{S_PASS}, 0
    s_cbranch_scc1 K2_RW0
    s_barrier
    ; x chunk(s) -> v[48:51], v[52:55] ; frag F=wave -> v[56:59] ; Wbot frag / w3 -> v[60:63]
    s_lshl_b32 s{S_T0+2}, s{S_NB0}, 7
    v_lshlrev_b32 v2, 4, v0
    v_add_u32 v2, s{S_T0+2}, v2
    v_and_b32 v3, 63, v0
    v_lshlrev_b32 v3, 4, v3                  ; lane*16
    s_cmp_ge_u32 s{S_WAVE}, 9
    s_cbranch_scc1 K2_XL9
    s_cmp_eq_u32 s{S_WAVE}, 8
    s_cbranch_scc1 K2_XL8
    s_lshl_b32 s{S_T0+2}, s{S_WAVE}, 10
    s_add_u32 s{S_T0+3}, s{S_T0+2}, {WS_FRAG}
    v_add_u32 v1, s{S_T0+3}, v3
    global_load_dwordx4 v[56:59], v1, s[{S_WS}:{S_WS+1}]       ; frag w
    v_add_u32 v1, 8192, v1
    global_load_dwordx4 v[64:67], v1, s[{S_WS}:{S_WS+1}]       ; frag 8+w
    v_add_u32 v1, 8192, v1
    global_load_dwordx4 v[60:63], v1, s[{S_WS}:{S_WS+1}]
    buffer_load_dwordx4 v[48:51], v2, s[{SRD_X}:{SRD_X+3}], 0 offen {XNT}
    v_add_u32 v2, 16384, v2
    buffer_load_dwordx4 v[52:55], v2, s[{SRD_X}:{SRD_X+3}], 0 offen {XNT}
    s_mov_b64 s[{S_MX}:{S_MX+1}], -1
    s_mov_b32 s{S_NX}, 5
    s_branch K2_PRE
K2_XL8:
    s_mov_b64 exec, 0xffff
    v_add_u32 v1, {WS_FRAG + 24*1024}, v3
    global_load_dwordx4 v[60:63], v1, s[{S_WS}:{S_WS+1}]
    s_mov_b64 exec, -1
K2_XL7:
    buffer_load_dwordx4 v[48:51], v2, s[{SRD_X}:{SRD_X+3}], 0 offen {XNT}
    v_add_u32 v2, 16384, v2
    s_movk_i32 s{S_T0+2}, 544
    v_cmp_gt_u32 s[{S_MX}:{S_MX+1}], s{S_T0+2}, v0
    s_mov_b64 exec, s[{S_MX}:{S_MX+1}]
    buffer_load_dwordx4 v[52:55], v2, s[{SRD_X}:{SRD_X+3}], 0 offen {XNT}
    s_mov_b64 exec, -1
    s_mov_b32 s{S_NX}, 3
    s_branch K2_PRE
K2_XL9:
    buffer_load_dwordx4 v[48:51], v2, s[{SRD_X}:{SRD_X+3}], 0 offen {XNT}
    s_mov_b32 s{S_NX}, 1
K2_PRE:
    s_lshl_b32 s{S_T0+2}, s{S_WAVE}, 10
    s_add_u32 s{S_T0+3}, s{S_T0+2}, {K2_FR}
    v_add_u32 v7, s{S_T0+3}, v3
    s_add_u32 s{S_T0+3}, s{S_T0+2}, {K2_WB}
    v_add_u32 v126, s{S_T0+3}, v3
    v_lshrrev_b32 v6, 3, v0
    v_mul_u32_u24 v6, 144, v6
    v_add_u32 v6, v6, v{V_C16}
    v_add_u32 v6, {K2_AGG}, v6
    s_lshr_b32 s{S_T0}, s{S_WAVE}, 1
    s_lshl_b32 s{S_T0}, s{S_T0}, 5           ; 32*tile
    v_and_b32 v122, 31, v0
    v_add_u32 v122, s{S_T0}, v122            ; nloc
    v_bfe_u32 v123, v0, 5, 1                 ; kh
    v_mul_u32_u24 v124, {ROWB}, v122
    v_lshl_add_u32 v124, v123, 6, v124
    s_and_b32 s{S_T0+1}, s{S_WAVE}, 1        ; t
    s_lshl_b32 s{S_T0+2}, s{S_T0+1}, 5
    v_add_u32 v124, s{S_T0+2}, v124
    v_cmp_gt_u32 s[{S_MQ}:{S_MQ+1}], s{S_C200}, v122
    v_mul_u32_u24 v122, 144, v122
    v_lshl_add_u32 v122, v123, 4, v122
    v_add_u32 v122, {K2_AGG}, v122
    s_lshl_b32 s{S_T0+2}, s{S_T0+1}, 12
    s_add_u32 s{S_T0+2}, s{S_T0+2}, {K2_FR}
    v_add_u32 v123, s{S_T0+2}, v3
""")
    XP = NPF if PF == 'a' else 0
    if PF == 'a':
        l2_prefetch(A, NPF)
    A(f"""
    v_mov_b32 v1, 4
    s_cmp_eq_u32 s{S_NX}, 5
    s_cbranch_scc1 K2_RW5
    s_cmp_eq_u32 s{S_NX}, 3
    s_cbranch_scc1 K2_RW4
    s_waitcnt vmcnt({1+XP})
    s_branch K2_RECOK
K2_RW4:
    s_waitcnt vmcnt({3+XP})
    s_branch K2_RECOK
K2_RW5:
    s_waitcnt vmcnt({5+XP})
    s_branch K2_RECOK
K2_RW0:
    v_mov_b32 v1, 4
    s_waitcnt vmcnt(0)
K2_RECOK:
""")
    if 'alt' not in EXP and 'xarr' not in EXP and 'qst' not in EXP: stamp(A, 3)
    for rho in range(2):
        for q in range(4):
            k = 4*rho + q
            rec = 96 + 8*rho + 2*q
            msk = S_MSK + 8*rho + 2*q
            A(f"""
    s_mov_b64 exec, s[{msk}:{msk+1}]
    ds_add_rtn_u32 v{24+k}, v{rec+1}, v1 offset:{K2_CNT}
""")
    CAP = 40
    EP = [46, 56, 58, 4]
    A(f"""
    s_mov_b64 exec, -1
    s_movk_i32 s{S_T0+2}, {CAP}
    s_movk_i32 s{S_T0+3}, {CAP*4-1}
    s_mov_b64 s[{S_T0}:{S_T0+1}], 0
    s_waitcnt lgkmcnt(0)
""")
    for rho in range(2):
        for q in range(4):
            k = 4*rho + q
            rec = 96 + 8*rho + 2*q
            msk = S_MSK + 8*rho + 2*q
            A(f"""
    v_mad_u32_u24 v{32+k}, v{rec+1}, s{S_T0+2}, v{24+k}
    v_cmp_lt_u32 vcc, s{S_T0+3}, v{24+k}
    v_add_u32 v{32+k}, {K2_REC}, v{32+k}
    s_and_b64 vcc, vcc, s[{msk}:{msk+1}]
    s_or_b64 s[{S_T0}:{S_T0+1}], s[{S_T0}:{S_T0+1}], vcc
""")
    A(f"""
    s_cmp_eq_u64 s[{S_T0}:{S_T0+1}], 0
    s_cbranch_scc1 K2_NOOVF
    v_mov_b32 v1, {K2_MISC+4}
    v_mov_b32 v2, 1
    ds_write_b32 v1, v2
    s_waitcnt lgkmcnt(0)
K2_NOOVF:
    s_barrier
""")
    if 'qst' not in EXP: stamp(A, 4)
    def sortA():
        A(f"""
    v_mov_b32 v41, 1
    v_mov_b32 v40, 63
""")
        for k in range(4):
            A(f"""
    v_lshrrev_b32 v{64+k}, 2, v{64+k}        ; deg
    v_min_u32 v{76+k}, 62, v{64+k}
    v_sub_u32 v{76+k}, 62, v{76+k}
    v_lshl_add_u32 v{EP[k]}, v43, 2, {k}    ; node
    v_cmp_lt_u32 vcc, {NB-1}, v{EP[k]}
    v_min_u32 v{EP[k]}, 199, v{EP[k]}
    v_mul_u32_u24 v{EP[k]+1}, {CAP*4}, v{EP[k]}
    v_cndmask_b32 v{76+k}, v{76+k}, v40, vcc
    v_lshlrev_b32 v{76+k}, 2, v{76+k}
    ds_add_rtn_u32 v{80+k}, v{76+k}, v41 offset:{K2_BINS}
    v_mul_u32_u24 v{EP[k]}, {ROWB}, v{EP[k]}
    v_add_u32 v{EP[k]+1}, {K2_REC}, v{EP[k]+1}
    v_lshl_or_b32 v{EP[k]}, v{64+k}, 16, v{EP[k]}
""")
    def sortB():
        A('v_mov_b32 v45, v44')
        scan64(A, 45)
        A('v_sub_u32 v45, v45, v44')
        for k in range(4):
            A(f'ds_bpermute_b32 v{76+k}, v{76+k}, v45')
        A('s_waitcnt lgkmcnt(0)')
        for k in range(4):
            A(f"""
    v_add_u32 v{76+k}, v{76+k}, v{80+k}      ; pos
    v_lshlrev_b32 v{80+k}, 3, v{76+k}
    ds_write_b64 v{80+k}, v[{EP[k]}:{EP[k]+1}] offset:{K2_ORD}
    v_and_b32 v{80+k}, 0x7f8, v{76+k}        ; (pos>>3)*8
    ds_max_u32 v{80+k}, v{64+k} offset:{K2_GM}
    v_sub_u32 v{64+k}, 0xffff, v{64+k}
    ds_max_u32 v{80+k}, v{64+k} offset:{K2_GM+4}
""")
    A(f"""
    v_mov_b32 v1, {K2_MISC}
    ds_read_b64 v[2:3], v1
    s_cmp_lt_u32 s{S_WAVE}, 14
    s_cbranch_scc1 K2_NOCNT
    s_setprio 3
    v_and_b32 v43, 63, v0                    ; lane
    v_lshlrev_b32 v42, 4, v43
    ds_read_b128 v[64:67], v42 offset:{K2_CNT}
K2_NOCNT:
    s_waitcnt lgkmcnt(0)
    v_readfirstlane_b32 s{S_MORE}, v2
    v_readfirstlane_b32 s{S_T0}, v3
    s_nop 3
    s_cmp_lg_u32 s{S_T0}, 0
    s_cbranch_scc1 K2_EXACT
    s_cmp_eq_u32 s{S_WAVE}, 15
    s_cbranch_scc0 K2_F1
""")
    sortA()
    A('K2_F1:')
    for rho in range(2):
        for q in range(4):
            k = 4*rho + q
            rec = 96 + 8*rho + 2*q
            msk = S_MSK + 8*rho + 2*q
            A(f"""
    s_mov_b64 exec, s[{msk}:{msk+1}]
    ds_write_b32 v{32+k}, v{rec}
""")
    A(f"""
    s_mov_b64 exec, -1
    s_cmp_eq_u32 s{S_WAVE}, 15
    s_cbranch_scc0 K2_SCATDONE
    v_lshlrev_b32 v42, 2, v43
    ds_read_b32 v44, v42 offset:{K2_BINS}
    s_waitcnt lgkmcnt(0)
""")
    sortB()
    A(f"""
    s_branch K2_SCATDONE
K2_EXACT:
    s_cmp_lt_u32 s{S_WAVE}, 14
    s_cbranch_scc1 K2_TOC
    s_cmp_eq_u32 s{S_WAVE}, 14
    s_cbranch_scc0 K2_SORTA
    v_add_u32 v68, v64, v65
    v_add_u32 v69, v68, v66
    v_add_u32 v70, v69, v67
    v_mov_b32 v71, v70
""")
    scan64(A, 71)
    A(f"""
    v_sub_u32 v72, v71, v70
    v_add_u32 v72, {K2_REC}, v72
    v_add_u32 v73, v72, v64
    v_add_u32 v74, v72, v68
    v_add_u32 v75, v72, v69
    ds_write_b128 v42, v[72:75] offset:{K2_OFF}
    s_waitcnt lgkmcnt(0)
    s_branch K2_TOC
K2_SORTA:
""")
    sortA()
    A(f"""
K2_TOC:
    s_barrier
""")
    for rho in range(2):
        for q in range(4):
            rec = 96 + 8*rho + 2*q
            msk = S_MSK + 8*rho + 2*q
            A(f"""
    s_mov_b64 exec, s[{msk}:{msk+1}]
    ds_read_b32 v{rec+1}, v{rec+1} offset:{K2_OFF}
""")
    A(f"""
    s_mov_b64 exec, -1
    s_cmp_eq_u32 s{S_WAVE}, 15
    s_cbranch_scc0 K2_NOS1
    v_lshlrev_b32 v42, 4, v43
    ds_read_b128 v[72:75], v42 offset:{K2_OFF}
    v_lshlrev_b32 v42, 2, v43
    ds_read_b32 v44, v42 offset:{K2_BINS}
K2_NOS1:
    s_waitcnt lgkmcnt(0)
""")
    for rho in range(2):
        for q in range(4):
            k = 4*rho + q
            rec = 96 + 8*rho + 2*q
            msk = S_MSK + 8*rho + 2*q
            A(f"""
    s_mov_b64 exec, s[{msk}:{msk+1}]
    v_add_u32 v{rec+1}, v{rec+1}, v{24+k}
    ds_write_b32 v{rec+1}, v{rec}
""")
    A(f"""
    s_mov_b64 exec, -1
    s_cmp_eq_u32 s{S_WAVE}, 15
    s_cbranch_scc0 K2_SCATDONE
""")
    for k in range(4):
        A(f'v_mov_b32 v{EP[k]+1}, v{72+k}')
    sortB()
    A('K2_SCATDONE:')
    A('s_setprio 0')
    if 'xarr' in EXP: stamp(A, 5)
    A(f"""
    s_cmp_lg_u32 s{S_PASS}, 0
    s_cbranch_scc1 K2_NOSTG
    s_waitcnt vmcnt({NPF if PF == 'a' else 0})
    ds_write_b128 v6, v[48:51]
    s_cmp_ge_u32 s{S_WAVE}, 9
    s_cbranch_scc1 K2_NOSTG
    s_mov_b64 exec, s[{S_MX}:{S_MX+1}]
    ds_write_b128 v6, v[52:55] offset:{128*144}
    s_cmp_eq_u32 s{S_WAVE}, 8
    s_cselect_b64 exec, 0xffff, -1
    ds_write_b128 v126, v[60:63]
    s_mov_b64 exec, -1
    s_cbranch_scc1 K2_NOSTG
    ds_write_b128 v7, v[56:59]
    ds_write_b128 v7, v[64:67] offset:8192
K2_NOSTG:
""")
    if PF == 'b':
        A(f's_cmp_lg_u32 s{S_PASS}, 0')
        A('s_cbranch_scc1 K2_NOPF')
        l2_prefetch(A, NPF)
        A('K2_NOPF:')
    A(f"""
    s_waitcnt lgkmcnt(0)
""")
    if 'xarr' in EXP: stamp(A, 3)
    A(f"""
    s_barrier
""")
    stamp(A, 6)
    A(f"""
K2_GROUP:
    v_bfe_u32 v1, v0, 3, 3
    s_lshl_b32 s{S_T0}, s{S_G}, 3
    v_add_lshl_u32 v1, s{S_T0}, v1, 3        ; (8g+slot)*8
    v_mov_b32 v2, s{S_T0}                    ; g*8
    ds_read_b64 v[{V_X}:{V_X+1}], v1 offset:{K2_ORD}
    ds_read_b64 v[{V_X+2}:{V_X+3}], v2 offset:{K2_GM}
    s_waitcnt lgkmcnt(0)
    v_mov_b32 v{V_A}, v{V_X+1}
    v_lshrrev_b32 v{V_DEG}, 16, v{V_X}
    v_and_b32 v{V_X}, 0xffff, v{V_X}
    v_add_u32 v{V_ROW}, v{V_X}, v{V_C16}
    v_readfirstlane_b32 s{S_MAX}, v{V_X+2}
    v_readfirstlane_b32 s{S_MIN}, v{V_X+3}
    s_cmp_eq_u32 s{S_FIRST}, 0
    s_cbranch_scc1 K2_FIRSTG
""")
    for j in range(RD):
        A(f'ds_read_u16 v{IDXR[j]}, v{V_A} offset:{4*j}')
    A(f"""
    ds_read_u16 v{V_P0}, v{V_A} offset:{4*RD}
    ds_read_u16_d16_hi v{V_E}, v{V_A} offset:2
    ds_read_b128 v[{V_Q}:{V_Q+3}], v{V_ROW} offset:{K2_Q}
    ds_read_b128 v[{V_Q+4}:{V_Q+7}], v{V_ROW} offset:{K2_Q+128}
    s_waitcnt lgkmcnt(4)
""")
    for j in range(RD):
        A(f'v_lshl_add_u32 v{IDXR[j]}, v{IDXR[j]}, 7, v{V_C16}')
        A(f'buffer_load_dwordx4 v[{SLOT[j]}:{SLOT[j]+3}], v{IDXR[j]}, s[{SRD_PTR}:{SRD_PTR+3}], 0 offen')
    A('s_branch K2_GO')
    A('K2_FIRSTG:')
    NPRE = int(os.environ.get('NPRE','2'))
    for j in range(NPRE):
        A(f'ds_read_u16 v{V_U+j}, v{V_A} offset:{4*j}')
    A(f"""
    s_mov_b32 s{S_FIRST}, 1
    s_cmp_ge_u32 s{S_WAVE}, 14
    s_cbranch_scc1 K2_FG14
""")
    for s_ in range(4):
        A(f'ds_read_b128 v[{48+4*s_}:{51+4*s_}], v122 offset:{32*s_}')
        A(f'ds_read_b128 v[{64+4*s_}:{67+4*s_}], v123 offset:{1024*s_}')
    if 'qst' in EXP: stamp(A, 1)
    A('s_waitcnt lgkmcnt(8)')
    if 'qst' in EXP: stamp(A, 3)
    for j in range(NPRE):
        A(f'v_lshl_add_u32 v{V_U+j}, v{V_U+j}, 7, v{V_C16}')
        A(f'buffer_load_dwordx4 v[{V_S+4*j}:{V_S+4*j+3}], v{V_U+j}, s[{SRD_PTR}:{SRD_PTR+3}], 0 offen')
    for s_ in range(4):
        A(f'ds_read_b128 v[{80+4*s_}:{83+4*s_}], v123 offset:{8192+1024*s_}')
    for s_ in range(4):
        cq = '0' if s_ == 0 else 'v[96:111]'
        A(f's_waitcnt lgkmcnt({10-2*s_})')
        A(f'v_mfma_f32_32x32x16_bf16 v[96:111], v[{64+4*s_}:{67+4*s_}], v[{48+4*s_}:{51+4*s_}], {cq}')
    A(f"""
    s_mov_b32 s{S_T0+2}, {NLOG2E}
    s_mov_b32 s{S_T0+3}, {NLOG2E}
    s_nop 7
    s_nop 1
""")
    for k in range(8):
        A(f'v_pk_mul_f32 v[{96+2*k}:{97+2*k}], v[{96+2*k}:{97+2*k}], s[{S_T0+2}:{S_T0+3}]')
    if 'qst' in EXP: stamp(A, 4)
    A(f's_mov_b64 exec, s[{S_MQ}:{S_MQ+1}]')
    for a_ in range(4):
        off = (a_ & 1)*128 + (a_ >> 1)*16 + K2_Q
        A(f'ds_write_b128 v124, v[{96+4*a_}:{99+4*a_}] offset:{off}')
    A('s_mov_b64 exec, -1')
    A('s_waitcnt lgkmcnt(4)')
    for s_ in range(4):
        cu = '0' if s_ == 0 else f'v[{V_U0}:{V_U0+15}]'
        A(f'v_mfma_f32_32x32x16_bf16 v[{V_U0}:{V_U0+15}], v[{80+4*s_}:{83+4*s_}], v[{48+4*s_}:{51+4*s_}], {cu}')
    if 'qst' in EXP: stamp(A, 5)
    A(f"""
    s_mov_b64 exec, -1
    s_branch K2_QDONE
K2_FG14:
    s_waitcnt lgkmcnt(0)
""")
    for j in range(NPRE):
        A(f'v_lshl_add_u32 v{V_U+j}, v{V_U+j}, 7, v{V_C16}')
        A(f'buffer_load_dwordx4 v[{V_S+4*j}:{V_S+4*j+3}], v{V_U+j}, s[{SRD_PTR}:{SRD_PTR+3}], 0 offen')
    A(f"""
K2_QDONE:
    v_lshlrev_b32 v1, 1, v{V_C16}            ; c*32
    v_add_u32 v1, {K2_W3}, v1
    ds_read_b128 v[{V_W}:{V_W+3}], v1
    ds_read_b128 v[{V_W+4}:{V_W+7}], v1 offset:16
""")
    for j in range(NPRE, RD):
        A(f'ds_read_u16 v{IDXR[j]}, v{V_A} offset:{4*j}')
    A(f"""
    ds_read_u16 v{V_P0}, v{V_A} offset:{4*RD}
    ds_read_u16_d16_hi v{V_E}, v{V_A} offset:2
    s_waitcnt lgkmcnt(0)
    s_barrier                                ; D2: Q ready
""")
    stamp(A, 2)
    A(f"""
    ds_read_b128 v[{V_Q}:{V_Q+3}], v{V_ROW} offset:{K2_Q}
    ds_read_b128 v[{V_Q+4}:{V_Q+7}], v{V_ROW} offset:{K2_Q+128}
""")
    for j in range(NPRE, RD):
        A(f'v_lshl_add_u32 v{IDXR[j]}, v{IDXR[j]}, 7, v{V_C16}')
        A(f'buffer_load_dwordx4 v[{SLOT[j]}:{SLOT[j]+3}], v{IDXR[j]}, s[{SRD_PTR}:{SRD_PTR+3}], 0 offen')
    A(f"""
K2_GO:
    s_sub_u32 s{S_MIN}, 0xffff, s{S_MIN}
    s_sub_i32 s{S_PF}, s{S_MAX}, {RD}
    s_mov_b32 s{S_ADV}, 0
    s_mov_b32 s{S_J}, 0
""")
    A(f"""
    s_cmp_eq_u32 s{S_MIN}, 0
    s_cbranch_scc1 K2_INIT0
    s_waitcnt vmcnt({RD-1}) lgkmcnt(0)
    v_lshlrev_b64 v[{V_X}:{V_X+1}], 16, v[{V_S}:{V_S+1}]
    v_lshlrev_b64 v[{V_X+2}:{V_X+3}], 16, v[{V_S+2}:{V_S+3}]
    v_pk_fma_f32 v[{V_N}:{V_N+1}], v[{V_E}:{V_E+1}], v[{V_W}:{V_W+1}], v[{V_S}:{V_S+1}] op_sel:[0,0,0] op_sel_hi:[0,1,1]
    v_pk_fma_f32 v[{V_N+2}:{V_N+3}], v[{V_E}:{V_E+1}], v[{V_W+2}:{V_W+3}], v[{V_S+2}:{V_S+3}] op_sel:[0,0,0] op_sel_hi:[0,1,1]
    v_pk_fma_f32 v[{V_N+4}:{V_N+5}], v[{V_E}:{V_E+1}], v[{V_W+4}:{V_W+5}], v[{V_X}:{V_X+1}] op_sel:[0,0,0] op_sel_hi:[0,1,1]
    v_pk_fma_f32 v[{V_N+6}:{V_N+7}], v[{V_E}:{V_E+1}], v[{V_W+6}:{V_W+7}], v[{V_X+2}:{V_X+3}] op_sel:[0,0,0] op_sel_hi:[0,1,1]
""")
    for k in range(4):
        A(f'v_pk_add_f32 v[{V_N+2*k}:{V_N+2*k+1}], v[{V_N+2*k}:{V_N+2*k+1}], v[{V_Q+2*k}:{V_Q+2*k+1}]')
    A(f"""
    v_exp_f32 v{V_X}, v{V_N}
    s_cmp_lt_i32 s{S_J}, s{S_PF}
    v_exp_f32 v{V_X+1}, v{V_N+1}
    s_cselect_b32 s{SRD_PT+2}, s{S_NREC}, 0
    v_exp_f32 v{V_X+2}, v{V_N+2}
    buffer_load_dwordx4 v[{V_S}:{V_S+3}], v[{V_P0}:{V_P0+1}], s[{SRD_PT}:{SRD_PT+3}], 0 idxen offen
    v_exp_f32 v{V_X+3}, v{V_N+3}
    ds_read_u16 v{V_P1}, v{V_A} offset:{4*(RD+1)}
    v_exp_f32 v{V_X+4}, v{V_N+4}
    ds_read_u16_d16_hi v{V_E+1}, v{V_A} offset:{4*1+2}
    v_exp_f32 v{V_X+5}, v{V_N+5}
    s_mov_b32 s{S_J}, 1
    v_exp_f32 v{V_X+6}, v{V_N+6}
    s_cmp_eq_u32 s{S_MAX}, 1
    v_exp_f32 v{V_X+7}, v{V_N+7}
""")
    for k in range(4):
        A(f'v_pk_add_f32 v[{V_D+2*k}:{V_D+2*k+1}], v[{V_X+2*k}:{V_X+2*k+1}], 1.0 op_sel_hi:[1,0]')
    A(f"""
    s_cbranch_scc1 K2_CLOSE
    s_branch K2_STEP1
K2_INIT0:
""")
    for i in range(8):
        A(f'v_mov_b32 v{V_N+i}, 0')
        A(f'v_mov_b32 v{V_D+i}, 1.0')
    A(f"""
    s_cmp_eq_u32 s{S_MAX}, 0
    s_cbranch_scc1 K2_CLOSE
""")
    A('K2_LOOP:')
    for rho in range(UR):
        S = SLOT[rho % RD]
        P = V_P0 if rho % 2 == 0 else V_P1
        Pn = V_P1 if rho % 2 == 0 else V_P0
        sel = rho & 1
        if rho == 1:
            A('K2_STEP1:')
        A(f"""
    s_waitcnt vmcnt({RD-1}) lgkmcnt(0)
    v_lshlrev_b64 v[{V_X}:{V_X+1}], 16, v[{S}:{S+1}]
    v_lshlrev_b64 v[{V_X+2}:{V_X+3}], 16, v[{S+2}:{S+3}]
    v_pk_fma_f32 v[{V_U}:{V_U+1}], v[{V_E}:{V_E+1}], v[{V_W}:{V_W+1}], v[{S}:{S+1}] op_sel:[{sel},0,0] op_sel_hi:[{sel},1,1]
    v_pk_fma_f32 v[{V_U+2}:{V_U+3}], v[{V_E}:{V_E+1}], v[{V_W+2}:{V_W+3}], v[{S+2}:{S+3}] op_sel:[{sel},0,0] op_sel_hi:[{sel},1,1]
    v_pk_fma_f32 v[{V_U+4}:{V_U+5}], v[{V_E}:{V_E+1}], v[{V_W+4}:{V_W+5}], v[{V_X}:{V_X+1}] op_sel:[{sel},0,0] op_sel_hi:[{sel},1,1]
    v_pk_fma_f32 v[{V_U+6}:{V_U+7}], v[{V_E}:{V_E+1}], v[{V_W+6}:{V_W+7}], v[{V_X+2}:{V_X+3}] op_sel:[{sel},0,0] op_sel_hi:[{sel},1,1]
""")
        for k in range(4):
            A(f'v_pk_add_f32 v[{V_U+2*k}:{V_U+2*k+1}], v[{V_U+2*k}:{V_U+2*k+1}], v[{V_Q+2*k}:{V_Q+2*k+1}]')
        A(f"""
    v_exp_f32 v{V_X}, v{V_U}
    s_cmp_lt_i32 s{S_J}, s{S_PF}
    v_exp_f32 v{V_X+1}, v{V_U+1}
    s_cselect_b32 s{SRD_PT+2}, s{S_NREC}, 0
    v_exp_f32 v{V_X+2}, v{V_U+2}
    buffer_load_dwordx4 v[{S}:{S+3}], v[{P}:{P+1}], s[{SRD_PT}:{SRD_PT+3}], 0 idxen offen
    v_exp_f32 v{V_X+3}, v{V_U+3}
    ds_read_u16 v{Pn}, v{V_A} offset:{4*(rho+RD+1)}
    v_exp_f32 v{V_X+4}, v{V_U+4}
    ds_read_u16_d16_hi v{V_E + ((rho+1)&1)}, v{V_A} offset:{4*(rho+1)+2}
    v_exp_f32 v{V_X+5}, v{V_U+5}
    s_cmp_ge_u32 s{S_J}, s{S_MIN}
    v_exp_f32 v{V_X+6}, v{V_U+6}
    s_cbranch_scc1 K2_MASK{rho}
K2_BACK{rho}:
    v_exp_f32 v{V_X+7}, v{V_U+7}
    s_add_u32 s{S_J}, s{S_J}, 1
""")
        for k in range(4):
            n, d, u, x = V_N+2*k, V_D+2*k, V_U+2*k, V_X+2*k
            A(f'v_pk_fma_f32 v[{n}:{n+1}], v[{n}:{n+1}], v[{x}:{x+1}], v[{n}:{n+1}]')
        for k in range(4):
            n, d, u, x = V_N+2*k, V_D+2*k, V_U+2*k, V_X+2*k
            A(f'v_pk_fma_f32 v[{n}:{n+1}], v[{u}:{u+1}], v[{d}:{d+1}], v[{n}:{n+1}]')
        A(f's_cmp_eq_u32 s{S_J}, s{S_MAX}')
        for k in range(4):
            n, d, u, x = V_N+2*k, V_D+2*k, V_U+2*k, V_X+2*k
            A(f'v_pk_fma_f32 v[{d}:{d+1}], v[{d}:{d+1}], v[{x}:{x+1}], v[{d}:{d+1}]')
        A(f"""
    s_mov_b64 exec, -1
    s_cbranch_scc1 K2_CLOSE
""")
    A(f"""
    v_add_u32 v{V_A}, {4*UR}, v{V_A}
    s_add_u32 s{S_ADV}, s{S_ADV}, {4*UR}
    s_branch K2_LOOP
""")
    for rho in range(UR):
        A(f"""
K2_MASK{rho}:
    v_cmp_lt_u32 vcc, s{S_J}, v{V_DEG}
    s_mov_b64 exec, vcc
    s_branch K2_BACK{rho}
""")
    A(f'''
K2_CLOSE:
    s_waitcnt lgkmcnt(0)
''')
    for r in range(8):
        A(f'v_rcp_f32 v{V_X+r}, v{V_D+r}')
    A('s_nop 0')
    for k in range(4):
        A(f'v_pk_mul_f32 v[{V_X+2*k}:{V_X+2*k+1}], v[{V_X+2*k}:{V_X+2*k+1}], s[{S_LN2}:{S_LN2+1}]')
    for k in range(4):
        A(f'v_pk_mul_f32 v[{V_U+2*k}:{V_U+2*k+1}], v[{V_N+2*k}:{V_N+2*k+1}], v[{V_X+2*k}:{V_X+2*k+1}]')
    for k in range(4):
        A(f'v_pk_fma_f32 v[{V_X+2*k}:{V_X+2*k+1}], v[{V_D+2*k}:{V_D+2*k+1}], 0, v[{V_U+2*k}:{V_U+2*k+1}] op_sel_hi:[1,0,1]')
    A(f'''
    v_pk_add_f32 v[{V_X}:{V_X+1}], v[{V_X}:{V_X+1}], v[{V_X+2}:{V_X+3}]
    v_pk_add_f32 v[{V_X+4}:{V_X+5}], v[{V_X+4}:{V_X+5}], v[{V_X+6}:{V_X+7}]
    v_pk_add_f32 v[{V_X}:{V_X+1}], v[{V_X}:{V_X+1}], v[{V_X+4}:{V_X+5}]
    v_add_f32 v{V_X}, v{V_X}, v{V_X+1}
    v_cmp_class_f32_e64 vcc, v{V_X}, s{S_CLS}
    s_cbranch_vccnz K2_SLOW
K2_WRITE:
    s_cmp_eq_u32 s{S_PASS}, 0
    s_cbranch_scc1 K2_WR0
    ds_read_b128 v[{V_X}:{V_X+3}], v{V_ROW} offset:{K2_AGG}
    ds_read_b128 v[{V_X+4}:{V_X+7}], v{V_ROW} offset:{K2_AGG+128}
    s_waitcnt lgkmcnt(0)
''')
    for k in range(4):
        A(f'v_pk_add_f32 v[{V_U+2*k}:{V_U+2*k+1}], v[{V_U+2*k}:{V_U+2*k+1}], v[{V_X+2*k}:{V_X+2*k+1}]')
    A(f'''
K2_WR0:
    ds_write_b128 v{V_ROW}, v[{V_U}:{V_U+3}] offset:{K2_AGG}
    ds_write_b128 v{V_ROW}, v[{V_U+4}:{V_U+7}] offset:{K2_AGG+128}
    s_mov_b32 s{S_G}, s{S_G2}
    s_mov_b32 s{S_G2}, 0xff
    s_cmp_lg_u32 s{S_G}, 0xff
    s_cbranch_scc1 K2_GROUP
    s_branch K2_GROUPS_DONE
''')
    A(f'''
K2_SLOW:
    s_waitcnt vmcnt(0)
    s_mov_b32 s{SRD_PT+2}, s{S_NREC}
    v_subrev_u32 v{V_A}, s{S_ADV}, v{V_A}
    s_mov_b32 s{S_J}, 0
''')
    for i in range(8):
        A(f'v_mov_b32 v{V_N+i}, 0')
    A(f'''
K2_SLOOP:
    ds_read_u16 v{V_P0}, v{V_A}
    ds_read_u16_d16_hi v{V_E}, v{V_A} offset:2
    s_waitcnt lgkmcnt(0)
    buffer_load_dwordx4 v[{V_S}:{V_S+3}], v[{V_P0}:{V_P0+1}], s[{SRD_PT}:{SRD_PT+3}], 0 idxen offen
    s_waitcnt vmcnt(0)
    v_lshlrev_b64 v[{V_X}:{V_X+1}], 16, v[{V_S}:{V_S+1}]
    v_lshlrev_b64 v[{V_X+2}:{V_X+3}], 16, v[{V_S+2}:{V_S+3}]
    v_pk_fma_f32 v[{V_U}:{V_U+1}], v[{V_E}:{V_E+1}], v[{V_W}:{V_W+1}], v[{V_S}:{V_S+1}] op_sel:[0,0,0] op_sel_hi:[0,1,1]
    v_pk_fma_f32 v[{V_U+2}:{V_U+3}], v[{V_E}:{V_E+1}], v[{V_W+2}:{V_W+3}], v[{V_S+2}:{V_S+3}] op_sel:[0,0,0] op_sel_hi:[0,1,1]
    v_pk_fma_f32 v[{V_U+4}:{V_U+5}], v[{V_E}:{V_E+1}], v[{V_W+4}:{V_W+5}], v[{V_X}:{V_X+1}] op_sel:[0,0,0] op_sel_hi:[0,1,1]
    v_pk_fma_f32 v[{V_U+6}:{V_U+7}], v[{V_E}:{V_E+1}], v[{V_W+6}:{V_W+7}], v[{V_X+2}:{V_X+3}] op_sel:[0,0,0] op_sel_hi:[0,1,1]
''')
    for k in range(4):
        A(f'v_pk_add_f32 v[{V_U+2*k}:{V_U+2*k+1}], v[{V_U+2*k}:{V_U+2*k+1}], v[{V_Q+2*k}:{V_Q+2*k+1}]')
    for r in range(8):
        A(f'v_exp_f32 v{V_X+r}, v{V_U+r}')
    A('s_nop 0')
    for r in range(8):
        A(f'v_add_f32 v{V_X+r}, 1.0, v{V_X+r}')
    for r in range(8):
        A(f'v_rcp_f32 v{V_X+r}, v{V_X+r}')
    A(f'''
    v_cmp_lt_u32 vcc, s{S_J}, v{V_DEG}
    s_add_u32 s{S_J}, s{S_J}, 1
    s_mov_b64 exec, vcc
''')
    for r in range(8):
        A(f'v_fmac_f32 v{V_N+r}, v{V_U+r}, v{V_X+r}')
    A(f'''
    s_mov_b64 exec, -1
    v_add_u32 v{V_A}, 4, v{V_A}
    s_cmp_lt_u32 s{S_J}, s{S_MAX}
    s_cbranch_scc1 K2_SLOOP
''')
    for k in range(4):
        A(f'v_pk_mul_f32 v[{V_U+2*k}:{V_U+2*k+1}], v[{V_N+2*k}:{V_N+2*k+1}], s[{S_LN2}:{S_LN2+1}]')
    A('s_branch K2_WRITE')
    A('K2_GROUPS_DONE:')
    A('s_waitcnt vmcnt(0)')
    stamp(A, 7)
    A(f'''
    s_cmp_eq_u32 s{S_MORE}, 0
    s_cbranch_scc1 K2_EPI
    s_waitcnt lgkmcnt(0)
    s_barrier
    s_add_u32 s{S_PASS}, s{S_PASS}, 1
    v_lshrrev_b32 v29, 3, v0
    v_lshlrev_b32 v2, 10, v29
    v_and_b32 v28, 7, v0
    v_mul_u32_u24 v30, {CHUNK*8}, v29
    v_lshl_add_u32 v30, v28, 4, v30
    v_lshlrev_b32 v28, 1, v28
    s_branch K2_PASS
K2_EPI:
    s_cmp_ge_u32 s{S_WAVE}, 14
    s_cbranch_scc1 K2_EPI_IDLE
    s_and_b32 s{S_T0+1}, s{S_WAVE}, 1       ; t
    s_lshr_b32 s{S_T0}, s{S_WAVE}, 1
    s_lshl_b32 s{S_T0}, s{S_T0}, 5          ; 32*tile
    v_and_b32 v4, 31, v0                    ; n
    v_add_u32 v122, s{S_T0}, v4             ; nloc
    v_bfe_u32 v123, v0, 5, 1                ; kh
    v_mul_u32_u24 v1, {ROWB}, v122
    v_lshl_add_u32 v1, v123, 4, v1
    s_lshl_b32 s{S_T0+2}, s{S_T0+1}, 12
    s_add_u32 s{S_T0+2}, s{S_T0+2}, {K2_WB}
    v_and_b32 v3, 63, v0
    v_lshlrev_b32 v2, 4, v3
    v_add_u32 v2, s{S_T0+2}, v2
    ds_read_b128 v[48:51], v2
    ds_read_b128 v[52:55], v2 offset:1024
    ds_read_b128 v[56:59], v2 offset:2048
    ds_read_b128 v[60:63], v2 offset:3072
    s_mul_i32 s{S_T0+2}, s{S_WAVE}, 2560
    v_mul_u32_u24 v6, 80, v4
    v_lshl_add_u32 v6, v123, 5, v6           ; row*80 + 32h
    v_add_u32 v6, s{S_T0+2}, v6
    v_lshrrev_b32 v2, 2, v3
    v_and_b32 v3, 3, v3                      ; quarter
    v_mul_u32_u24 v7, 80, v2
    v_lshl_add_u32 v7, v3, 4, v7
    v_add_u32 v7, s{S_T0+2}, v7
    v_add_u32 v2, s{S_T0}, v2
    v_add_u32 v5, s{S_NB0}, v2
    v_lshlrev_b32 v5, 7, v5
    v_lshl_add_u32 v5, v3, 4, v5
    s_lshl_b32 s{S_T0+1}, s{S_T0+1}, 6       ; 64t bytes
    v_add_u32 v5, s{S_T0+1}, v5
    s_movk_i32 s{S_T0}, {NB}
    v_cmp_gt_u32 s[{S_MQ}:{S_MQ+1}], s{S_T0}, v2
    v_add_u32 v2, 16, v2
    v_cmp_gt_u32 s[{S_MX}:{S_MX+1}], s{S_T0}, v2
    s_mov_b32 s{S_T0+2}, {NLOG2E}
    s_mov_b32 s{S_T0+3}, {NLOG2E}
    s_waitcnt lgkmcnt(0)
    s_barrier
''')
    stamp(A, 8)
    for s in range(4):
        A(f'ds_read_b128 v[{64+8*s}:{67+8*s}], v1 offset:{K2_AGG+32*s}')
        A(f'ds_read_b128 v[{68+8*s}:{71+8*s}], v1 offset:{K2_AGG+32*s+128}')
    for s in range(4):
        A(f's_waitcnt lgkmcnt({6-2*s})')
        for k in range(4):
            A(f'v_cvt_pk_bf16_f32 v{32+4*s+k}, v{64+8*s+2*k}, v{65+8*s+2*k}')
        if s > 0:
            A(f'v_mfma_f32_32x32x16_bf16 v[{V_U0}:{V_U0+15}], v[{48+4*(s-1)}:{51+4*(s-1)}], v[{32+4*(s-1)}:{35+4*(s-1)}], v[{V_U0}:{V_U0+15}]')
    A('s_nop 1')
    A(f'v_mfma_f32_32x32x16_bf16 v[{V_U0}:{V_U0+15}], v[60:63], v[44:47], v[{V_U0}:{V_U0+15}]')
    A('s_nop 7')
    A('s_nop 3')
    for k in range(8):
        A(f'v_pk_mul_f32 v[{32+2*k}:{33+2*k}], v[{V_U0+2*k}:{V_U0+2*k+1}], s[{S_T0+2}:{S_T0+3}]')
    for i in range(16):
        A(f'v_exp_f32 v{32+i}, v{32+i}')
    for k in range(8):
        A(f'v_pk_add_f32 v[{32+2*k}:{33+2*k}], v[{32+2*k}:{33+2*k}], 1.0 op_sel_hi:[1,0]')
    for i in range(16):
        A(f'v_rcp_f32 v{32+i}, v{32+i}')
    for k in range(8):
        A(f'v_pk_mul_f32 v[{32+2*k}:{33+2*k}], v[{V_U0+2*k}:{V_U0+2*k+1}], v[{32+2*k}:{33+2*k}]')
    for k in range(8):
        A(f'v_cvt_pk_bf16_f32 v{48+k}, v{32+2*k}, v{33+2*k}')
    A(f'''
    ds_write_b128 v6, v[48:51] offset:{K2_Q}
    ds_write_b128 v6, v[52:55] offset:{K2_Q+16}
    s_waitcnt lgkmcnt(0)
    ds_read_b128 v[56:59], v7 offset:{K2_Q}
    ds_read_b128 v[60:63], v7 offset:{K2_Q+16*80}
    s_mov_b64 exec, s[{S_MQ}:{S_MQ+1}]
    s_waitcnt lgkmcnt(1)
    buffer_store_dwordx4 v[56:59], v5, s[{SRD_OUT}:{SRD_OUT+3}], 0 offen {ST2}
    s_mov_b64 exec, s[{S_MX}:{S_MX+1}]
    s_waitcnt lgkmcnt(0)
    buffer_store_dwordx4 v[60:63], v5, s[{SRD_OUT}:{SRD_OUT+3}], 0 offen offset:2048 {ST2}
K2_FIN:
''')
    if asm.STAMPS:
        A('s_mov_b64 exec, -1')
        A('s_waitcnt vmcnt(0)')
    stamp(A, 9)
    flush_stamps(A, 10, S_WS, 0x100000, tmpv=122)
    A(f'''
    s_endpgm
K2_EPI_IDLE:
    s_waitcnt lgkmcnt(0)
    s_barrier
''')
    stamp(A, 8)
    stamp(A, 9)
    flush_stamps(A, 10, S_WS, 0x100000, tmpv=122)
    A('''
K2_END:
    s_endpgm
''')
```
